```python
import torch

def _softmax(x, axis=-1):
    return torch.softmax(x, dim=axis)

def _gelu(x):
    return torch.nn.functional.gelu(x, approximate='tanh')

def _silu(x):
    return torch.nn.functional.silu(x)

def _sigmoid(x):
    return torch.sigmoid(x)

def _layernorm(x, axis=-1, eps=1e-05):
    m = x.mean(dim=axis, keepdim=True)
    v = x.var(dim=axis, keepdim=True, unbiased=False)
    return (x - m) / torch.sqrt(v + eps)

def _scatter_add(tgt, idx, src, axis=0):
    return tgt.clone().index_add_(axis, idx, src)

def _segment_sum(src, seg, n):
    out = torch.zeros((n,) + src.shape[1:], dtype=src.dtype)
    return out.index_add_(0, seg, src)

def _pad(x, pw):
    flat = tuple((v for pair in reversed(pw) for v in pair))
    return torch.nn.functional.pad(x, flat)
kernel_name = 'concat_heads__linear_attn_block__memory_aug_recurrent_mem_tr__prompt'

def setup_inputs():

    _w = lambda a: (lambda t: t.to(torch.bfloat16) if t.is_floating_point() else t)(torch.as_tensor(a))

    def _A_setup():
        B, S, D = (1, 2048, 640)
        return {'x': _w((lambda *s: torch.randn(*s, dtype=torch.bfloat16) * 0.05)(B, S, D)), 'wqkv': _w((lambda *s: torch.randn(*s, dtype=torch.bfloat16) * 1.6)(D, 3 * D)), 'wo': _w((lambda *s: torch.randn(*s, dtype=torch.bfloat16) * 0.1)(D, D))}
    _A_in = _A_setup()

    def _B_setup():
        B, S, Dm = (1, 2048, 640)
        H, Dh = (32, 192)
        M, seg = (8, 32)
        seg = min(seg, S)
        S = S // seg * seg
        return {'x': _w((lambda *s: torch.randn(*s, dtype=torch.bfloat16) * 0.05)(B, S, Dm)), 'mem0': _w((lambda *s: torch.randn(*s, dtype=torch.bfloat16) * 0.8)(B, M, Dm)), 'Wq': _w((lambda *s: torch.randn(*s, dtype=torch.bfloat16) * 1.6)(Dm, H, Dh) * Dm ** (-0.5)), 'Wk': _w((lambda *s: torch.randn(*s, dtype=torch.bfloat16) * 1.6)(Dm, H, Dh) * Dm ** (-0.5)), 'Wv': _w((lambda *s: torch.randn(*s, dtype=torch.bfloat16) * 0.8)(Dm, H, Dh) * Dm ** (-0.5)), 'Wo': _w((lambda *s: torch.randn(*s, dtype=torch.bfloat16) * 0.8)(H, Dh, Dm) * (H * Dh) ** (-0.5)), 'seg_len': seg}
    _B_in = _B_setup()
    return {'A_x': _A_in['x'], 'A_wqkv': _A_in['wqkv'], 'A_wo': _A_in['wo'], 'B_x': _B_in['x'], 'B_mem0': _B_in['mem0'], 'B_Wq': _B_in['Wq'], 'B_Wk': _B_in['Wk'], 'B_Wv': _B_in['Wv'], 'B_Wo': _B_in['Wo'], 'B_seg_len': _B_in['seg_len']}

def reference(A_x, A_wqkv, A_wo, B_x, B_mem0, B_Wq, B_Wk, B_Wv, B_Wo, B_seg_len):

    def _A_ref(x, wqkv, wo):
        B, S, D = x.shape
        H = 32
        Dh = D // H
        qkv = (lambda x, *d: x.permute(*d))((x @ wqkv).reshape(B, S, 3, H, Dh), 2, 0, 3, 1, 4)
        q, k, v = (qkv[0], qkv[1], qkv[2])
        phi = lambda t: torch.where(t > 0, t + 1, torch.exp(t)) + 1e-06
        pq, pk = (phi(q), phi(k))
        kv = torch.einsum('bhsd,bhse->bhde', pk, v)
        z = torch.einsum('bhsd->bhd', pk)
        num = torch.einsum('bhqd,bhde->bhqe', pq, kv)
        den = torch.einsum('bhqd,bhd->bhq', pq, z)[..., None] + 1e-06
        o = num / den
        return (lambda x, *d: x.permute(*d))(o, 0, 2, 1, 3).reshape(B, S, D) @ wo

    def _B_ref(x, mem0, Wq, Wk, Wv, Wo, seg_len):
        B, S, Dm = x.shape
        H, Dh = (Wq.shape[1], Wq.shape[2])
        M = mem0.shape[1]
        scale = Dh ** (-0.5)
        n_seg = S // seg_len
        L = M + seg_len
        idx = torch.arange(L)
        mask = (idx[:, None] < M) | (idx[:, None] >= idx[None, :])
        mem = mem0
        outs = []
        for s in range(n_seg):
            xs = x[:, s * seg_len:(s + 1) * seg_len, :].clone()
            h = torch.concatenate([mem, xs], axis=1)
            q = torch.einsum('btd,dhe->bhte', h, Wq)
            k = torch.einsum('btd,dhe->bhte', h, Wk)
            v = torch.einsum('btd,dhe->bhte', h, Wv)
            scores = torch.einsum('bhqe,bhke->bhqk', q, k) * scale
            scores = torch.where(mask[None, None], scores, -1000000000.0)
            p = _softmax(scores, axis=-1)
            o = torch.einsum('bhqk,bhke->bhqe', p, v)
            o = torch.einsum('bhte,hed->btd', o, Wo)
            mem = o[:, :M, :].clone()
            outs.append(o[:, M:, :])
        return torch.concatenate(outs, axis=1)
    a = _A_ref(A_x, A_wqkv, A_wo)
    b = _B_ref(B_x, B_mem0, B_Wq, B_Wk, B_Wv, B_Wo, B_seg_len)
    return torch.concatenate([a, b], axis=-1)
```

```python
class Asm:
    nlab=0
    def __init__(self):
        self.lines=[]
    def __call__(self, s):
        for l in s.split('\n'):
            l=l.strip()
            if l: self.lines.append(('' if l.endswith(':') else '  ')+l)
    def lab(self, p='L'):
        Asm.nlab+=1; return f'{p}_{Asm.nlab}'
    def text(self): return '\n'.join(self.lines)+'\n'

def interleave(main, extra_lists, per=None):
    out=[]
    n=len(main)
    extras=[e if isinstance(e,list) else [e] for e in extra_lists]
    k=0; m=len(extras)
    for i,x in enumerate(main):
        out.append(x)
        upto=(m*(i+1)+n-1)//n if per is None else min(m,(i+1)*per)
        while k<upto:
            out.extend(extras[k]); k+=1
    while k<m:
        out.extend(extras[k]); k+=1
    return out

S=2048; D=640; H=32; DH=192; NSEG=64
WS_KX   = 0
WS_QX   = WS_KX + 64*384*1024
WS_CX   = WS_QX + 64*384*1024
WS_UM   = WS_CX + 64*32*2*640*32
WS_KM   = WS_UM + 64*32*640*16
WS_QA   = WS_KM + 64*384*256
WS_END1 = WS_QA + 64*120*1024
WS_SIZE = 268435456

WS_TS = 250*1024*1024

XL_M=0; XL_S=10240; XL_V=10240+20480; XL_GRP=43008; XL_SLOT=8*XL_GRP
WS_XL = 170*1024*1024
WS_XG = 172*1024*1024
XG_SLOT=20*16384
WS_CTR = 174*1024*1024

WS_PQ = 176*1024*1024
WS_M  = 180*1024*1024
WS_Z  = 181*1024*1024

WS_P = 184*1024*1024
WS_FPD = WS_CTR + 65536
```

```python
from common import *
SRD_WS='s[40:43]'; SRD_OUT='s[44:47]'
F_WAVE=48; F_S=49; F_NQ=50; F_T=51; F_T2=52; F_QO=53; F_KO=54; F_KMO=55; F_CO=56; F_UO=57; F_H=58; F_CSC=59; F_OUT=60
F_MASK=64
V_LANE=1; V_QL=2; V_KL=3; V_KML=4; V_CL=5; V_UL=6; V_OL=7; V_LW=8; V_T0=9; V_T1=10; V_MX=11; V_MX2=12; V_SUM=13; V_NINF=14
V_SX=16
V_SM=32
V_P=48
V_C=64
V_U=104
V_ACC=128
V_TMP=208
def qa(set_,b): return set_*96+b*4
def ka(set_,b): return set_*96+48+b*4
def kma(b): return 192+b*4
LDS_FIN=81920

def fin_setup(a):
    a(f'''
    v_and_b32 v{V_LANE}, 63, v0
    v_lshrrev_b32 v{V_T0}, 6, v0
    s_nop 0
    v_readfirstlane_b32 s{F_WAVE}, v{V_T0}
    v_and_b32 v{V_T0}, 31, v{V_LANE}              ; t / j' / n
    v_lshrrev_b32 v{V_T1}, 5, v{V_LANE}           ; half
    v_lshlrev_b32 v{V_QL}, 5, v{V_T0}
    v_lshl_add_u32 v{V_QL}, v{V_T1}, 4, v{V_QL}
    v_and_b32 v{V_KL}, 0x13, v{V_T0}
    v_and_b32 v{V_MX}, 4, v{V_T0}
    v_lshl_add_u32 v{V_KL}, v{V_MX}, 1, v{V_KL}
    v_and_b32 v{V_MX}, 8, v{V_T0}
    v_lshrrev_b32 v{V_MX}, 1, v{V_MX}
    v_add_u32 v{V_KL}, v{V_KL}, v{V_MX}
    v_lshlrev_b32 v{V_KL}, 5, v{V_KL}
    v_lshl_add_u32 v{V_KL}, v{V_T1}, 4, v{V_KL}
    v_lshrrev_b32 v{V_KML}, 3, v{V_T0}
    v_mul_u32_u24 v{V_KML}, {12*16384}, v{V_KML}
    v_and_b32 v{V_MX}, 7, v{V_T0}
    v_lshl_add_u32 v{V_KML}, v{V_MX}, 5, v{V_KML}
    v_lshl_add_u32 v{V_KML}, v{V_T1}, 4, v{V_KML}
    v_lshrrev_b32 v{V_CL}, 4, v{V_T0}
    v_lshlrev_b32 v{V_UL}, 14, v{V_CL}
    v_lshlrev_b32 v{V_CL}, 16, v{V_CL}
    v_and_b32 v{V_MX}, 15, v{V_T0}
    v_lshl_add_u32 v{V_CL}, v{V_MX}, 5, v{V_CL}
    v_lshl_add_u32 v{V_CL}, v{V_T1}, 4, v{V_CL}
    v_lshl_add_u32 v{V_UL}, v{V_MX}, 4, v{V_UL}
    v_lshl_add_u32 v{V_UL}, v{V_T1}, 3, v{V_UL}
    v_mul_u32_u24 v{V_OL}, 2560, v{V_T0}
    v_lshl_add_u32 v{V_OL}, v{V_T1}, 4, v{V_OL}
    v_lshlrev_b32 v{V_LW}, 4, v{V_LANE}
    v_mov_b32 v{V_NINF}, 0xff800000
    v_mov_b32 v{V_P+10}, 0
    v_mov_b32 v{V_P+11}, 0
    s_mov_b32 s{F_CSC}, 0x3dd53b95
    ''')
    for k in range(5): a(f'v_mov_b32 v{V_U+4*k+2}, 0\nv_mov_b32 v{V_U+4*k+3}, 0')
    for r in range(16):
        q,i=divmod(r,4)
        def sig(x): return (x&0x13)|((x&4)<<1)|((x&8)>>1)
        t0=sig(8*q+i); t1=sig(8*q+4+i)
        a(f'''
        v_mov_b32 v{V_MX}, {t0}
        v_mov_b32 v{V_MX2}, {t1}
        v_cmp_eq_u32 vcc, 1, v{V_T1}
        s_nop 1
        v_cndmask_b32 v{V_MX}, v{V_MX}, v{V_MX2}, vcc
        v_cmp_le_u32 vcc, v{V_MX}, v{V_T0}
        s_mov_b64 s[{F_MASK+2*r}:{F_MASK+2*r+1}], vcc
        ''')

def qk_loads(set_, ldf):
    out=[]
    for b in range(12):
        out.append([f's_add_u32 s{F_T}, s{F_QO}, {b*65536}', f'buffer_load_dwordx4 a[{qa(set_,b)}:{qa(set_,b)+3}], v{V_QL}, {SRD_WS}, s{F_T} offen {ldf}'])
        out.append([f's_add_u32 s{F_T}, s{F_KO}, {b*65536}', f'buffer_load_dwordx4 a[{ka(set_,b)}:{ka(set_,b)+3}], v{V_KL}, {SRD_WS}, s{F_T} offen {ldf}'])
    return out
def km_loads(ldf):
    return [[f's_add_u32 s{F_T}, s{F_KMO}, {b*16384}', f'buffer_load_dwordx4 a[{kma(b)}:{kma(b)+3}], v{V_KML}, {SRD_WS}, s{F_T} offen {ldf}'] for b in range(12)]
def cu_loads(ldf):
    out=[]
    for nb in range(5):
        out.append([f's_add_u32 s{F_T}, s{F_CO}, {2*nb*65536}', f'buffer_load_dwordx4 v[{V_C+8*nb}:{V_C+8*nb+3}], v{V_CL}, {SRD_WS}, s{F_T} offen {ldf}'])
        out.append([f'buffer_load_dwordx4 v[{V_C+8*nb+4}:{V_C+8*nb+7}], v{V_CL}, {SRD_WS}, s{F_T} offen offset:512 {ldf}'])
        out.append([f's_add_u32 s{F_T}, s{F_UO}, {2*nb*16384}', f'buffer_load_dwordx2 v[{V_U+4*nb}:{V_U+4*nb+1}], v{V_UL}, {SRD_WS}, s{F_T} offen {ldf}'])
    return out

def fin_item(a, ldf='', lqk=''):
    a(f'''
    s_lshl_b32 s{F_H}, s{F_WAVE}, 3
    s_mul_i32 s{F_T}, s{F_H}, {12*64}
    s_add_u32 s{F_T}, s{F_T}, s{F_S}
    s_lshl_b32 s{F_T2}, s{F_T}, 10
    s_add_u32 s{F_QO}, s{F_T2}, {WS_QX}
    s_add_u32 s{F_KO}, s{F_T2}, {WS_KX}
    s_lshl_b32 s{F_T2}, s{F_T}, 8
    s_add_u32 s{F_KMO}, s{F_T2}, {WS_KM}
    s_mul_i32 s{F_T}, s{F_H}, 40
    s_mul_i32 s{F_T2}, s{F_NQ}, 10
    s_add_u32 s{F_T}, s{F_T}, s{F_T2}
    s_lshl_b32 s{F_T}, s{F_T}, 6
    s_add_u32 s{F_T}, s{F_T}, s{F_S}
    s_lshl_b32 s{F_T2}, s{F_T}, 10
    s_add_u32 s{F_CO}, s{F_T2}, {WS_CX}
    s_lshl_b32 s{F_T2}, s{F_T}, 8
    s_add_u32 s{F_UO}, s{F_T2}, {WS_UM}
    ''')
    for g in qk_loads(0,ldf)+km_loads(ldf):
        for x in g: a(x)
    a(f's_add_u32 s{F_QO}, s{F_QO}, {12*65536}\ns_add_u32 s{F_KO}, s{F_KO}, {12*65536}')
    for hh in range(8):
        cur=hh&1
        a('s_waitcnt vmcnt(0)')
        cu=cu_loads(ldf)
        nxt=[]
        if hh<7: nxt=qk_loads(cur^1,ldf)
        mm=[]
        for b in range(12):
            c='0' if b==0 else f'v[{V_SX}:{V_SX+15}]'
            mm.append(f'v_mfma_f32_32x32x16_bf16 v[{V_SX}:{V_SX+15}], a[{ka(cur,b)}:{ka(cur,b)+3}], a[{qa(cur,b)}:{qa(cur,b)+3}], {c}')
            c='0' if b==0 else f'v[{V_SM}:{V_SM+15}]'
            mm.append(f'v_mfma_f32_32x32x16_bf16 v[{V_SM}:{V_SM+15}], a[{kma(b)}:{kma(b)+3}], a[{qa(cur,b)}:{qa(cur,b)+3}], {c}')
        for x in interleave(mm,cu+nxt): a(x)
        nafter=len(nxt)
        if hh==3:
            pass
        if hh<7: a(f's_add_u32 s{F_QO}, s{F_QO}, {12*65536}\ns_add_u32 s{F_KO}, s{F_KO}, {12*65536}')
        a('s_nop 7\ns_nop 3')
        if hh==3:
            a(f's_add_u32 s{F_KMO}, s{F_KMO}, {4*12*16384}')
            for g in km_loads(ldf):
                for x in g: a(x)
            nafter+=12
        M=V_SM+4*(hh&3)
        X=V_SX
        for r in range(16): a(f'v_cndmask_b32 v{X+r}, v{V_NINF}, v{X+r}, s[{F_MASK+2*r}:{F_MASK+2*r+1}]')
        a(f'''
        v_max3_f32 v{V_MX}, v{X}, v{X+1}, v{X+2}
        v_max3_f32 v{V_MX2}, v{X+3}, v{X+4}, v{X+5}
        v_max3_f32 v{V_MX}, v{X+6}, v{X+7}, v{V_MX}
        v_max3_f32 v{V_MX2}, v{X+8}, v{X+9}, v{V_MX2}
        v_max3_f32 v{V_MX}, v{X+10}, v{X+11}, v{V_MX}
        v_max3_f32 v{V_MX2}, v{X+12}, v{X+13}, v{V_MX2}
        v_max3_f32 v{V_MX}, v{X+14}, v{X+15}, v{V_MX}
        v_max3_f32 v{V_MX2}, v{M}, v{M+1}, v{V_MX2}
        v_max3_f32 v{V_MX}, v{M+2}, v{M+3}, v{V_MX}
        v_max_f32 v{V_MX}, v{V_MX}, v{V_MX2}
        v_mov_b32 v{V_MX2}, v{V_MX}
        s_nop 1
        v_permlane32_swap_b32 v{V_MX}, v{V_MX2}
        s_nop 0
        v_max_f32 v{V_MX}, v{V_MX}, v{V_MX2}
        v_mul_f32 v{V_MX}, s{F_CSC}, v{V_MX}
        ''')
        vals=[X+r for r in range(16)]+[M+i for i in range(4)]
        for v in vals: a(f'v_fma_f32 v{v}, v{v}, s{F_CSC}, -v{V_MX}')
        for v in vals: a(f'v_exp_f32 v{v}, v{v}')
        a('s_nop 0')
        a(f'v_add_f32 v{V_SUM}, v{vals[0]}, v{vals[1]}\nv_add_f32 v{V_MX2}, v{vals[2]}, v{vals[3]}')
        for k in range(4,20,2): a(f'v_add_f32 v{V_SUM}, v{V_SUM}, v{vals[k]}\nv_add_f32 v{V_MX2}, v{V_MX2}, v{vals[k+1]}')
        a(f'''
        v_add_f32 v{V_SUM}, v{V_SUM}, v{V_MX2}
        v_mov_b32 v{V_MX2}, v{V_SUM}
        s_nop 1
        v_permlane32_swap_b32 v{V_SUM}, v{V_MX2}
        s_nop 0
        v_add_f32 v{V_SUM}, v{V_SUM}, v{V_MX2}
        v_rcp_f32 v{V_SUM}, v{V_SUM}
        s_nop 0
        ''')
        for v in vals: a(f'v_mul_f32 v{v}, v{v}, v{V_SUM}')
        for k in range(8): a(f'v_cvt_pk_bf16_f32 v{V_P+k}, v{X+2*k}, v{X+2*k+1}')
        a(f'v_cvt_pk_bf16_f32 v{V_P+8}, v{M}, v{M+1}\nv_cvt_pk_bf16_f32 v{V_P+9}, v{M+2}, v{M+3}')
        a(f's_waitcnt vmcnt({nafter})')
        for nb in range(5):
            d=V_ACC+16*nb
            c='0' if hh==0 else f'v[{d}:{d+15}]'
            a(f'v_mfma_f32_32x32x16_bf16 v[{d}:{d+15}], v[{V_C+8*nb}:{V_C+8*nb+3}], v[{V_P}:{V_P+3}], {c}')
        for nb in range(5):
            d=V_ACC+16*nb
            a(f'v_mfma_f32_32x32x16_bf16 v[{d}:{d+15}], v[{V_C+8*nb+4}:{V_C+8*nb+7}], v[{V_P+4}:{V_P+7}], v[{d}:{d+15}]')
        for nb in range(5):
            d=V_ACC+16*nb
            a(f'v_mfma_f32_32x32x16_bf16 v[{d}:{d+15}], v[{V_U+4*nb}:{V_U+4*nb+3}], v[{V_P+8}:{V_P+11}], v[{d}:{d+15}]')
        a(f's_add_u32 s{F_CO}, s{F_CO}, {40*65536}\ns_add_u32 s{F_UO}, s{F_UO}, {40*16384}')
    a('s_nop 7\ns_nop 7')
    a(f's_mul_i32 s{F_T}, s{F_WAVE}, 20480\nv_add_u32 v{V_T0}, s{F_T}, v{V_LW}')
    for nb in range(5):
        for q in range(4):
            a(f'ds_write_b128 v{V_T0}, v[{V_ACC+16*nb+4*q}:{V_ACC+16*nb+4*q+3}] offset:{(nb*4+q)*1024}')
    a('s_waitcnt lgkmcnt(0)\ns_barrier')
    def reduce_block(nbreg_expr, off):
        pass
    a(f'''
    s_mul_i32 s{F_OUT}, s{F_S}, {32*2560}
    s_mul_i32 s{F_T}, s{F_NQ}, 320
    s_add_u32 s{F_OUT}, s{F_OUT}, s{F_T}
    s_add_u32 s{F_OUT}, s{F_OUT}, 1280
    s_lshl_b32 s{F_T}, s{F_WAVE}, 12
    v_add_u32 v{V_T0}, s{F_T}, v{V_LW}
    s_lshl_b32 s{F_T2}, s{F_WAVE}, 6
    s_add_u32 s{F_T2}, s{F_T2}, s{F_OUT}
    ''')
    def do_block():
        R=V_TMP
        for w in range(3):
            for q in range(4):
                a(f'ds_read_b128 v[{R+16*w+4*q}:{R+16*w+4*q+3}], v{V_T0} offset:{w*20480+q*1024}')
        for q in range(4):
            a(f'ds_read_b128 v[{V_SX+4*q}:{V_SX+4*q+3}], v{V_T0} offset:{3*20480+q*1024}')
        a('s_waitcnt lgkmcnt(0)')
        for k in range(0,16,2):
            a(f'v_pk_add_f32 v[{R+k}:{R+k+1}], v[{R+k}:{R+k+1}], v[{R+16+k}:{R+16+k+1}]')
            a(f'v_pk_add_f32 v[{V_SX+k}:{V_SX+k+1}], v[{V_SX+k}:{V_SX+k+1}], v[{R+32+k}:{R+32+k+1}]')
        for k in range(0,16,2): a(f'v_pk_add_f32 v[{R+k}:{R+k+1}], v[{R+k}:{R+k+1}], v[{V_SX+k}:{V_SX+k+1}]')
        d=V_P
        for k in range(8): a(f'v_cvt_pk_bf16_f32 v{d+k}, v{R+2*k}, v{R+2*k+1}')
        a('s_nop 1')
        a(f'v_permlane32_swap_b32 v{d}, v{d+2}\nv_permlane32_swap_b32 v{d+1}, v{d+3}\nv_permlane32_swap_b32 v{d+4}, v{d+6}\nv_permlane32_swap_b32 v{d+5}, v{d+7}')
        a(f'buffer_store_dwordx4 v[{d}:{d+3}], v{V_OL}, {SRD_OUT}, s{F_T2} offen')
        a(f'buffer_store_dwordx4 v[{d+4}:{d+7}], v{V_OL}, {SRD_OUT}, s{F_T2} offen offset:32')
    do_block()
    L=a.lab('FB')
    a(f'''
    s_cmp_eq_u32 s{F_WAVE}, 0
    s_cbranch_scc0 {L}
    v_add_u32 v{V_T0}, 16384, v{V_T0}
    s_add_u32 s{F_T2}, s{F_OUT}, 256
    s_nop 1
    ''')
    do_block()
    a(f'{L}:')
```

```python
from common import *
V_TID=0; V_LANE=1
V_XA=[2,3,4,5]
V_W0=6; V_W1=7
V_P0=8; V_P1=9
V_XG=[10,11]
V_WG=12
V_ST=13
V_T=14; V_T2=15
V_STC=12
V_PK=16
ACC=64
XB=[0,32768]; WB=[65536,65536+24576]
LDS_GEMM=65536+2*24576
S_WAVE=48
S_XBASE=49; S_XLDS=50; S_WST=51; S_WLDS=52; S_WSTRIDE=53; S_WSTEP=54; S_T=55; S_D0=56; S_D1=57
S_TOK0=58; S_COL=59; S_DST=60; S_NC16=61; S_MODE=62; S_T2=63; S_T3=64
SRD_X='s[32:35]'; SRD_W='s[36:39]'; SRD_WS='s[40:43]'; SRD_O='s[44:47]'

def gemm_lane_setup(a, TB):
    a(f'''
    v_and_b32 v{V_LANE}, 63, v{V_TID}
    v_lshrrev_b32 v{V_T}, 6, v{V_TID}
    s_nop 0
    v_readfirstlane_b32 s{S_WAVE}, v{V_T}
    ''')
    a(f'''
    v_and_b32 v{V_T}, 31, v{V_LANE}              ; t
    v_lshrrev_b32 v{V_T2}, 5, v{V_LANE}          ; half
    v_lshrrev_b32 v{V_PK}, 1, v{V_T}
    v_and_b32 v{V_PK}, 7, v{V_PK}                ; f=(t>>1)&7
    s_mul_i32 s{S_T}, s{S_WAVE}, {32*TB*128}
    v_lshlrev_b32 v{V_PK+1}, 7, v{V_T}           ; t*128
    v_add_u32 v{V_PK+1}, s{S_T}, v{V_PK+1}       ; row*128
    ''')
    for ks in range(4):
        a(f'''
        v_add_u32 v{V_PK+2}, {2*ks}, v{V_T2}
        v_xor_b32 v{V_PK+2}, v{V_PK+2}, v{V_PK}
        v_lshlrev_b32 v{V_PK+2}, 4, v{V_PK+2}
        v_add_u32 v{V_XA[ks]}, v{V_PK+1}, v{V_PK+2}
        ''')
    a(f'''
    v_lshlrev_b32 v{V_ST}, 5, v{V_T}
    v_lshlrev_b32 v{V_PK+2}, 4, v{V_T2}
    v_add_u32 v{V_ST}, v{V_ST}, v{V_PK+2}
    ''')
    a(f'''
    v_and_b32 v{V_PK}, 15, v{V_LANE}             ; i
    v_lshrrev_b32 v{V_PK+1}, 2, v{V_PK}          ; i>>2
    v_and_b32 v{V_PK+2}, 3, v{V_PK}              ; i&3
    v_lshrrev_b32 v{V_PK+3}, 4, v{V_LANE}        ; gidx
    v_and_b32 v{V_PK+4}, 1, v{V_PK+3}            ; sub
    v_lshlrev_b32 v{V_PK+4}, 5, v{V_PK+4}        ; sub*32
    v_lshlrev_b32 v{V_PK+2}, 3, v{V_PK+2}        ; (i&3)*8
    v_add_u32 v{V_PK+4}, v{V_PK+4}, v{V_PK+2}
    v_lshlrev_b32 v{V_PK+5}, 3, v{V_T2}          ; 8*half
    v_add_u32 v{V_PK+5}, v{V_PK+5}, v{V_PK+1}
    v_lshlrev_b32 v{V_PK+5}, 6, v{V_PK+5}
    v_add_u32 v{V_PK+5}, v{V_PK+5}, v{V_PK+4}
    v_add_u32 v{V_W0}, {WB[0]}, v{V_PK+5}
    v_add_u32 v{V_W1}, {WB[1]}, v{V_PK+5}
    v_lshlrev_b32 v{V_PK+5}, 2, v{V_T2}          ; 4*half
    v_add_u32 v{V_PK+5}, v{V_PK+5}, v{V_PK+1}
    v_lshlrev_b32 v{V_PK+5}, 6, v{V_PK+5}
    v_add_u32 v{V_PK+5}, v{V_PK+5}, v{V_PK+4}
    v_add_u32 v{V_P0}, {WB[0]}, v{V_PK+5}
    v_add_u32 v{V_P1}, {WB[1]}, v{V_PK+5}
    ''')
    for par in range(2):
        a(f'''
        v_lshrrev_b32 v{V_PK}, 4, v{V_LANE}
        v_add_u32 v{V_PK}, {4*par}, v{V_PK}
        v_and_b32 v{V_PK+1}, 7, v{V_LANE}
        v_xor_b32 v{V_PK}, v{V_PK}, v{V_PK+1}
        v_lshlrev_b32 v{V_PK}, 4, v{V_PK}
        v_lshrrev_b32 v{V_PK+1}, 3, v{V_LANE}
        v_mul_u32_u24 v{V_PK+1}, 1280, v{V_PK+1}
        v_add_u32 v{V_XG[par]}, v{V_PK}, v{V_PK+1}
        ''')
    a(f'''
    s_mul_i32 s{S_XLDS}, s{S_WAVE}, {4*TB*1024}
    s_lshl_b32 s{S_WLDS}, s{S_WAVE}, 10
    ''')

def x_dma(TB, st):
    out=[]
    for n in range(4*TB):
        out.append([f's_add_u32 m0, s{S_XLDS}, {XB[st&1]+n*1024}',
                    f's_add_u32 s{S_T}, s{S_XBASE}, {n*8*1280+st*128}',
                    f'buffer_load_dwordx4 v{V_XG[n&1]}, {SRD_X}, s{S_T} offen lds'])
    return out
def w_dma(NFB, buf, sreg, step=True):
    out=[]
    for fb in range(NFB):
        out.append([f's_add_u32 m0, s{S_WLDS}, {WB[buf]+fb*4096}',
                    f's_add_u32 s{S_T}, s{sreg}, {fb*64}',
                    f'buffer_load_dwordx4 v{V_WG}, {SRD_W}, s{S_T} offen lds'])
    if step: out[-1].append(f's_add_u32 s{sreg}, s{sreg}, s{S_WSTEP}')
    return out

def frag_reads(TB,NFB,setidx,buf,ks):
    b=32*setidx
    ins=[]
    vw=V_W0 if buf==0 else V_W1
    for t in range(TB):
        ins.append(f'ds_read_b128 a[{b+24+4*t}:{b+24+4*t+3}], v{V_XA[ks]} offset:{XB[buf]+t*4096}')
    for fb in range(NFB):
        ins.append(f'ds_read_b64_tr_b16 a[{b+4*fb}:{b+4*fb+1}], v{vw} offset:{fb*4096+ks*1024}')
        ins.append(f'ds_read_b64_tr_b16 a[{b+4*fb+2}:{b+4*fb+3}], v{vw} offset:{fb*4096+ks*1024+256}')
    return ins
def acc_reg(TB,fb,t): return ACC+(fb*TB+t)*16
def mfmas(TB,NFB,setidx,first,orient='FT'):
    b=32*setidx; ins=[]
    for fb in range(NFB):
        for t in range(TB):
            r=acc_reg(TB,fb,t)
            c='0' if first else f'v[{r}:{r+15}]'
            W=f'a[{b+4*fb}:{b+4*fb+3}]'; X=f'a[{b+24+4*t}:{b+24+4*t+3}]'
            A,B=(W,X) if orient=='FT' else (X,W)
            ins.append(f'v_mfma_f32_32x32x16_bf16 v[{r}:{r+15}], {A}, {B}, {c}')
    return ins

def proj_item_setup(a, TB):
    a(f'''
    s_mul_i32 s{S_T}, s{S_WAVE}, {32*TB}
    s_add_u32 s{S_T}, s{S_T}, s{S_TOK0}
    s_mul_i32 s{S_XBASE}, s{S_T}, 1280
    s_lshl_b32 s{S_T}, s{S_WAVE}, 4
    s_mul_i32 s{S_WST}, s{S_T}, s{S_WSTRIDE}
    s_add_u32 s{S_WST}, s{S_WST}, s{S_COL}
    s_lshl_b32 s{S_WSTEP}, s{S_WSTRIDE}, 6
    v_lshrrev_b32 v{V_T}, 2, v{V_LANE}
    v_mul_lo_u32 v{V_T}, v{V_T}, s{S_WSTRIDE}
    v_and_b32 v{V_T2}, 3, v{V_LANE}
    v_lshlrev_b32 v{V_T2}, 4, v{V_T2}
    v_add_u32 v{V_WG}, v{V_T}, v{V_T2}
    ''')

def proj_main(a, TB, NFB, NST=10, orient='FT', tail_dma=None):
    for g in x_dma(TB,0)+w_dma(NFB,0,S_WST):
        for x in g: a(x)
    d1=w_dma(NFB,1,S_WST)+x_dma(TB,1)
    for g in d1:
        for x in g: a(x)
    a(f's_waitcnt vmcnt({len(d1)})')
    a('s_barrier')
    for x in frag_reads(TB,NFB,0,0,0): a(x)
    pend=[]
    for st in range(NST):
        buf=st&1
        for ks in range(4):
            cur=ks&1
            extras=[]
            a('s_waitcnt lgkmcnt(0)')
            if ks<3:
                extras+=frag_reads(TB,NFB,cur^1,buf,ks+1)
            else:
                if st<NST-1:
                    a('s_waitcnt vmcnt(0)')
                    a('s_barrier')
                    extras+=frag_reads(TB,NFB,cur^1,buf^1,0)
            dm=[]
            if ks==0 and pend:
                dm=pend; pend=[]
            if ks==3 and st+2<NST:
                full=w_dma(NFB,buf,S_WST)+x_dma(TB,st+2)
                h=(len(full)+1)//2
                dm=full[:h]; pend=full[h:]
            mm=mfmas(TB,NFB,cur,first=(st==0 and ks==0),orient=orient)
            body=[]
            ei=0; di=0
            for i,m in enumerate(mm):
                body.append(m)
                for _ in range(2):
                    if ei<len(extras): body.append(extras[ei]); ei+=1
                if di<len(dm) and (len(extras)==0 or i>=1):
                    body.extend(dm[di]); di+=1
            while ei<len(extras): body.append(extras[ei]); ei+=1
            while di<len(dm): body.extend(dm[di]); di+=1
            for x in body: a(x)

def pack_block(r, d):
    return [f'v_cvt_pk_bf16_f32 v{d+k}, v{r+2*k}, v{r+2*k+1}' for k in range(8)]
def swap_block(d):
    return [f'v_permlane32_swap_b32 v{d}, v{d+2}', f'v_permlane32_swap_b32 v{d+1}, v{d+3}',
            f'v_permlane32_swap_b32 v{d+4}, v{d+6}', f'v_permlane32_swap_b32 v{d+5}, v{d+7}']

def store_epilogue(a, TB, NFB, srd, flags=''):
    a('s_nop 7\ns_nop 7')
    k=0
    for fb in range(NFB):
        for t in range(TB):
            r=acc_reg(TB,fb,t); d=V_PK+8*(k&1); k+=1
            for x in pack_block(r,d): a(x)
            a('s_nop 1')
            for x in swap_block(d): a(x)
            sd=S_D0 if t==0 else S_D1
            a(f's_add_u32 s{S_T}, s{sd}, {(2*fb)*65536}')
            a(f'buffer_store_dwordx4 v[{d}:{d+3}], v{V_ST}, {srd}, s{S_T} offen {flags}')
            a(f's_add_u32 s{S_T}, s{sd}, {(2*fb+1)*65536}')
            a(f'buffer_store_dwordx4 v[{d+4}:{d+7}], v{V_ST}, {srd}, s{S_T} offen {flags}')

TS_ON=True
def ts(a, idx, wave_reg=S_WAVE, real=False, vt=14):
    import gemm as _m
    if not _m.TS_ON: return
    L=a.lab('TS')
    a(f'''
    s_cmp_eq_u32 s{wave_reg}, 0
    s_cbranch_scc0 {L}
    {'s_memrealtime' if real else 's_memtime'} s[70:71]
    s_waitcnt lgkmcnt(0)
    s_lshl_b32 s72, s2, 8
    s_add_u32 s72, s72, {WS_TS+idx*4}
    v_mov_b32 v{vt}, s70
    s_mov_b64 s[70:71], exec
    s_mov_b64 exec, 1
    buffer_store_dword v{vt}, off, {SRD_WS}, s72
    s_mov_b64 exec, s[70:71]
    {L}:
    ''')

S_WO=65+10
S_C0=76; S_C1=77
ACC2=[160,176,192,208,224,240,32,48]
def wo_dma(j):
    out=[]
    for nb in range(2):
        for q in range(3):
            out.append([f's_add_u32 m0, s{S_WOL}, {WB[j&1]+nb*12288+q*1024}',
                        f's_add_u32 s{S_T}, s{S_WO}, {q*16*1280+j*128+nb*64}',
                        f'buffer_load_dwordx4 v{V_WG2}, {SRD_O}, s{S_T} offen lds'])
    return out
S_WOL=78
V_WG2=15
def wo_reads(j,b):
    vp=V_P0 if (j&1)==0 else V_P1
    s=8*(b%8); ins=[]
    for nb in range(2):
        ins.append(f'ds_read_b64_tr_b16 a[{s+4*nb}:{s+4*nb+1}], v{vp} offset:{nb*12288+b*1024}')
        ins.append(f'ds_read_b64_tr_b16 a[{s+4*nb+2}:{s+4*nb+3}], v{vp} offset:{nb*12288+b*1024+512}')
    return ins
def vfrag(TB,tb,b):
    k=(b>>1)*TB+tb
    r=ACC+8*k+4*(b&1)
    return f'v[{r}:{r+3}]'
def c_epi_block(TB,j,tb,nb,d,flags):
    r=ACC2[(j&1)*4+tb*2+nb]
    sd=S_C0 if tb==0 else S_C1
    g=[]
    g.append(pack_block(r,d)[:4]); g.append(pack_block(r,d)[4:]+['s_nop 1'])
    g.append(swap_block(d))
    g.append([f's_add_u32 s{S_T}, s{sd}, {(4*j+2*nb)*65536}', f'buffer_store_dwordx4 v[{d}:{d+3}], v{V_STC}, {SRD_WS}, s{S_T} offen {flags}'])
    g.append([f'buffer_store_dwordx4 v[{d+4}:{d+7}], v{V_STC}, {SRD_WS}, s{S_T} offen offset:512 {flags}'])
    return g
def vc_stage2(a, TB, flags=''):
    assert TB==2
    a('s_barrier')
    for g in wo_dma(0)+wo_dma(1):
        for x in g: a(x)
    a('s_nop 7\ns_nop 7')
    for k in range(6*TB):
        r=ACC+16*k; d=ACC+8*k
        for i in range(8): a(f'v_cvt_pk_bf16_f32 v{d+i}, v{r+2*i}, v{r+2*i+1}')
    a('s_waitcnt vmcnt(6)\ns_barrier')
    for x in wo_reads(0,0)+wo_reads(0,1): a(x)
    NJ=10
    for j in range(NJ):
        epi=[]
        if j>0:
            k=0
            for tb in range(TB):
                for nb in range(2):
                    epi+=c_epi_block(TB,j-1,tb,nb,PK2[k&1],flags)
                    k+=1
        ei=0
        for b in range(12):
            s=8*(b%8)
            extras=[]
            if b==10:
                a('s_waitcnt lgkmcnt(0)')
                if j<NJ-1:
                    nst=8 if j>0 else 0
                    a(f's_waitcnt vmcnt({nst})')
                    a('s_barrier')
            elif b==11:
                a('s_waitcnt lgkmcnt(4)' if j<NJ-1 else 's_waitcnt lgkmcnt(0)')
            else:
                a('s_waitcnt lgkmcnt(4)')
            if b<10: extras+=[[x] for x in wo_reads(j,b+2)]
            elif j<NJ-1: extras+=[[x] for x in wo_reads(j+1,b-10)]
            if b==10 and j+2<NJ: extras+=wo_dma(j+2)[:3]
            if b==11 and j+2<NJ: extras+=wo_dma(j+2)[3:]
            mm=[]
            for tb in range(TB):
                for nb in range(2):
                    r=ACC2[(j&1)*4+tb*2+nb]
                    c='0' if b==0 else f'v[{r}:{r+15}]'
                    mm.append(f'v_mfma_f32_32x32x16_bf16 v[{r}:{r+15}], {vfrag(TB,tb,b)}, a[{s+4*nb}:{s+4*nb+3}], {c}')
            eg=[]
            if epi and 1<=b<=9:
                upto=(len(epi)*b+8)//9
                while ei<upto: eg.append(epi[ei]); ei+=1
            allx=extras+eg
            for x in interleave(mm,allx): a(x)
        assert ei==len(epi)
    a('s_nop 7\ns_nop 7')
    k=0
    for tb in range(TB):
        for nb in range(2):
            for g in c_epi_block(TB,NJ-1,tb,nb,PK2[k&1],flags):
                for x in g: a(x)
            k+=1
PK2=[16,24]
```

```python
from common import *
import gemm
from gemm import *
def phi_store_epilogue(a, TB, NFB, s_cb0, flags=''):
    a('s_nop 7\ns_nop 7')
    a(f's_mov_b32 s{S_T3}, 0x3fb8aa3b')
    a(f'v_mov_b32 v{V_T}, 0x358637bd')
    k=0
    for fb in range(NFB):
        L=a.lab('PH')
        a(f's_add_u32 s{S_T2}, s{s_cb0}, {fb}\ns_cmp_ge_u32 s{S_T2}, 40\ns_cbranch_scc1 {L}')
        for t in range(TB):
            r=acc_reg(TB,fb,t)
            for i in range(16):
                x=r+i; tmp=V_PK+(i&7)
                a(f'v_min_f32 v{tmp}, 0, v{x}\nv_mul_f32 v{tmp}, s{S_T3}, v{tmp}\nv_exp_f32 v{tmp}, v{tmp}\nv_max_f32 v{x}, 0, v{x}\nv_add_f32 v{x}, v{x}, v{V_T}\nv_add_f32 v{x}, v{x}, v{tmp}')
        a(f'{L}:')
        for t in range(TB):
            r=acc_reg(TB,fb,t); d=V_PK+8*(k&1); k+=1
            for x in pack_block(r,d): a(x)
            a('s_nop 1')
            for x in swap_block(d): a(x)
            sd=S_D0 if t==0 else S_D1
            a(f's_add_u32 s{S_T}, s{sd}, {(2*fb)*65536}')
            a(f'buffer_store_dwordx4 v[{d}:{d+3}], v{V_ST}, {SRD_WS}, s{S_T} offen {flags}')
            a(f's_add_u32 s{S_T}, s{sd}, {(2*fb+1)*65536}')
            a(f'buffer_store_dwordx4 v[{d+4}:{d+7}], v{V_ST}, {SRD_WS}, s{S_T} offen {flags}')

def out_epilogue(a, TB, NFB, srd, v_ol, flags=''):
    a('s_nop 7\ns_nop 7')
    k=0
    for fb in range(NFB):
        for t in range(TB):
            r=acc_reg(TB,fb,t); d=V_PK+8*(k&1); k+=1
            for x in pack_block(r,d): a(x)
            a('s_nop 1')
            for x in swap_block(d): a(x)
            sd=S_D0 if t==0 else S_D1
            a(f'buffer_store_dwordx4 v[{d}:{d+3}], v{v_ol}, {srd}, s{sd} offen offset:{fb*64} {flags}')
            a(f'buffer_store_dwordx4 v[{d+4}:{d+7}], v{v_ol}, {srd}, s{sd} offen offset:{fb*64+32} {flags}')

K_WAVE=48; K_I=49; K_T=51; K_T2=52; K_PK=53; K_V0=54; K_V1=55; K_V2=56; K_LB=57; K_SEG=58
KV_LANE=1; KV_TR=2; KV_TRP=3; KV_LIN=4; KV_T0=5; KV_T1=6; KV_T2=7; KV_HF=8; KV_HALF=9; KV_WG=10; KV_ST=11
KV_ACC=64
KV_FA=16
KV_ONE=48
KV_B=128
KV_RD=160
KV_M=192
LDS_KV=131072
def a2_item(a, P_WO, ldf=''):
    a(f'''
    v_and_b32 v{KV_LANE}, 63, v0
    v_lshrrev_b32 v{KV_T0}, 6, v0
    s_nop 0
    v_readfirstlane_b32 s{K_WAVE}, v{KV_T0}
    v_lshlrev_b32 v{KV_LIN}, 4, v{KV_LANE}
    v_lshrrev_b32 v{KV_HALF}, 5, v{KV_LANE}
    v_and_b32 v{KV_T0}, 15, v{KV_LANE}
    v_lshrrev_b32 v{KV_T1}, 2, v{KV_T0}
    v_lshl_add_u32 v{KV_T1}, v{KV_HALF}, 3, v{KV_T1}
    v_lshlrev_b32 v{KV_TR}, 5, v{KV_T1}
    v_and_b32 v{KV_T0}, 3, v{KV_T0}
    v_lshl_add_u32 v{KV_TR}, v{KV_T0}, 3, v{KV_TR}
    v_bfe_u32 v{KV_T1}, v{KV_LANE}, 4, 1
    v_lshl_add_u32 v{KV_TR}, v{KV_T1}, 10, v{KV_TR}
    s_mul_i32 s{K_LB}, s{K_WAVE}, 32768
    v_add_u32 v{KV_TR}, s{K_LB}, v{KV_TR}
    v_and_b32 v{KV_T0}, 15, v{KV_LANE}
    v_lshrrev_b32 v{KV_T2}, 2, v{KV_T0}
    v_lshl_add_u32 v{KV_T2}, v{KV_HALF}, 2, v{KV_T2}
    v_lshlrev_b32 v{KV_TRP}, 6, v{KV_T2}
    v_lshl_add_u32 v{KV_TRP}, v{KV_T1}, 5, v{KV_TRP}
    v_and_b32 v{KV_T0}, 3, v{KV_T0}
    v_lshl_add_u32 v{KV_TRP}, v{KV_T0}, 3, v{KV_TRP}
    v_add_u32 v{KV_TRP}, s{K_LB}, v{KV_TRP}
    v_mov_b32 v{KV_ONE}, 0x3f803f80
    v_mov_b32 v{KV_ONE+1}, 0x3f803f80
    v_mov_b32 v{KV_ONE+2}, 0x3f803f80
    v_mov_b32 v{KV_ONE+3}, 0x3f803f80
    s_lshl_b32 s{K_T}, s{K_I}, 1
    s_add_u32 s{K_PK}, s{K_T}, 40
    s_lshl_b32 s{K_PK}, s{K_PK}, 16
    s_add_u32 s{K_PK}, s{K_PK}, {WS_QA}
    s_sub_u32 s{K_T2}, s{K_I}, 1
    s_max_i32 s{K_T2}, s{K_T2}, 0
    s_lshl_b32 s{K_V0}, s{K_T2}, 1
    s_add_u32 s{K_V0}, s{K_V0}, 80
    s_lshl_b32 s{K_V0}, s{K_V0}, 16
    s_add_u32 s{K_V0}, s{K_V0}, {WS_QA}
    s_add_u32 s{K_V1}, s{K_T}, 80
    s_lshl_b32 s{K_V1}, s{K_V1}, 16
    s_add_u32 s{K_V1}, s{K_V1}, {WS_QA}
    s_add_u32 s{K_T2}, s{K_I}, 1
    s_min_u32 s{K_T2}, s{K_T2}, 19
    s_lshl_b32 s{K_V2}, s{K_T2}, 1
    s_add_u32 s{K_V2}, s{K_V2}, 80
    s_lshl_b32 s{K_V2}, s{K_V2}, 16
    s_add_u32 s{K_V2}, s{K_V2}, {WS_QA}
    s_lshl_b32 s{K_SEG}, s{K_WAVE}, 14
    ''')
    for r in range(64): a(f'v_mov_b32 v{KV_ACC+r}, 0')
    a(f's_mov_b32 s59, 0\nA2_LOOP:')
    for sg in range(4):
        for bi,(base,sub) in enumerate(((K_PK,0),(K_PK,1),(K_V0,0),(K_V0,1),(K_V1,0),(K_V1,1),(K_V2,0),(K_V2,1))):
            a(f'''
            s_add_u32 m0, s{K_LB}, {(sg*8+bi)*1024}
            s_add_u32 s{K_T}, s{base}, s{K_SEG}
            s_add_u32 s{K_T}, s{K_T}, {sub*65536+sg*1024}
            buffer_load_dwordx4 v{KV_LIN}, {SRD_WS}, s{K_T} offen {ldf} lds
            ''')
    a('s_waitcnt vmcnt(0)')
    for sg in range(4):
        for kb in range(2):
            o=sg*8192+kb*16*32
            f=KV_FA
            a(f'ds_read_b64_tr_b16 v[{f}:{f+1}], v{KV_TR} offset:{o}\nds_read_b64_tr_b16 v[{f+2}:{f+3}], v{KV_TR} offset:{o+128}')
            for j in range(3):
                a(f'ds_read_b64_tr_b16 v[{f+4+4*j}:{f+5+4*j}], v{KV_TR} offset:{o+2048*(j+1)}\nds_read_b64_tr_b16 v[{f+6+4*j}:{f+7+4*j}], v{KV_TR} offset:{o+2048*(j+1)+128}')
            a('s_waitcnt lgkmcnt(0)')
            first=(sg==0 and kb==0)
            for j in range(3):
                d=KV_ACC+16*j
                a(f'v_mfma_f32_32x32x16_bf16 v[{d}:{d+15}], v[{f+4+4*j}:{f+7+4*j}], v[{f}:{f+3}], v[{d}:{d+15}]')
            d=KV_ACC+48
            a(f'v_mfma_f32_32x32x16_bf16 v[{d}:{d+15}], v[{KV_ONE}:{KV_ONE+3}], v[{f}:{f+3}], v[{d}:{d+15}]')
            a('s_nop 3')
    a(f'''
    s_add_u32 s{K_SEG}, s{K_SEG}, 4096
    s_add_u32 s59, s59, 1
    s_cmp_lt_u32 s59, 4
    s_cbranch_scc1 A2_LOOP
    s_nop 7
    s_nop 7
    s_barrier
    ''')
    a(f's_lshl_b32 s{K_T}, s{K_WAVE}, 14\nv_add_u32 v{KV_T0}, s{K_T}, v{KV_LIN}')
    for j in range(4):
        for q in range(4):
            a(f'ds_write_b128 v{KV_T0}, v[{KV_ACC+16*j+4*q}:{KV_ACC+16*j+4*q+3}] offset:{(j*4+q)*1024}')
    a('s_waitcnt lgkmcnt(0)\ns_barrier')
    a(f's_lshl_b32 s{K_T}, s{K_WAVE}, 12\nv_add_u32 v{KV_T0}, s{K_T}, v{KV_LIN}')
    R=KV_RD
    for w in range(4):
        for q in range(4):
            a(f'ds_read_b128 v[{R+16*w+4*q}:{R+16*w+4*q+3}], v{KV_T0} offset:{w*16384+q*1024}')
    a('s_waitcnt lgkmcnt(0)')
    for k in range(0,16,2):
        a(f'v_pk_add_f32 v[{R+k}:{R+k+1}], v[{R+k}:{R+k+1}], v[{R+16+k}:{R+16+k+1}]')
        a(f'v_pk_add_f32 v[{R+32+k}:{R+32+k+1}], v[{R+32+k}:{R+32+k+1}], v[{R+48+k}:{R+48+k+1}]')
    for k in range(0,16,2): a(f'v_pk_add_f32 v[{R+k}:{R+k+1}], v[{R+k}:{R+k+1}], v[{R+32+k}:{R+32+k+1}]')
    a('s_barrier')
    LZ=a.lab('AZ'); LN=a.lab('AN')
    a(f's_cmp_eq_u32 s{K_WAVE}, 3\ns_cbranch_scc1 {LZ}')
    a(f'''
    v_and_b32 v{KV_T0}, 31, v{KV_LANE}
    s_lshl_b32 s{K_T}, s{K_I}, 5
    v_add_u32 v{KV_T0}, s{K_T}, v{KV_T0}
    v_mul_u32_u24 v{KV_HF}, 3277, v{KV_T0}
    v_lshrrev_b32 v{KV_HF}, 16, v{KV_HF}          ; f/20
    s_add_u32 s{K_T}, s{K_I}, s{K_WAVE}
    s_sub_u32 s{K_T}, s{K_T}, 1
    s_lshl_b32 s{K_T2}, s{K_T}, 5
    v_lshlrev_b32 v{KV_T1}, 2, v{KV_HALF}
    v_add_u32 v{KV_T1}, s{K_T2}, v{KV_T1}
    ''')
    for r in range(16):
        q,i=divmod(r,4)
        a(f'''
        v_add_u32 v{KV_T2}, {8*q+i}, v{KV_T1}
        v_max_i32 v{KV_T0}, 0, v{KV_T2}
        v_mul_u32_u24 v{KV_T0}, 3277, v{KV_T0}
        v_lshrrev_b32 v{KV_T0}, 16, v{KV_T0}
        v_cmp_eq_u32 vcc, v{KV_T0}, v{KV_HF}
        v_cmp_le_i32 s[60:61], 0, v{KV_T2}
        s_nop 1
        s_and_b64 vcc, vcc, s[60:61]
        s_nop 1
        v_cndmask_b32 v{R+r}, 0, v{R+r}, vcc
        ''')
    for k in range(8): a(f'v_cvt_pk_bf16_f32 v{R+16+k}, v{R+2*k}, v{R+2*k+1}')
    a(f's_lshl_b32 s{K_T}, s{K_WAVE}, 11\ns_add_u32 s{K_T}, s{K_T}, {KVM_LDS}\nv_add_u32 v{KV_T0}, s{K_T}, v{KV_LIN}')
    a(f'ds_write_b128 v{KV_T0}, v[{R+16}:{R+19}] offset:0\nds_write_b128 v{KV_T0}, v[{R+20}:{R+23}] offset:1024')
    a(f's_branch {LN}\n{LZ}:')
    a(f'''
    v_lshlrev_b32 v{KV_T0}, 2, v{KV_LANE}
    s_lshl_b32 s{K_T}, s{K_I}, 7
    s_add_u32 s{K_T}, s{K_T}, {WS_Z}
    s_mov_b32 exec_hi, 0
    buffer_store_dword v{R}, v{KV_T0}, {SRD_WS}, s{K_T} offen {gemm_store_flags()}
    s_mov_b64 exec, -1
    {LN}:
    ''')
    a(f'''
    s_mov_b32 s36, s{P_WO}
    s_mov_b32 s37, s{P_WO+1}
    s_mov_b32 s38, {640*640*2}
    s_mov_b32 s39, 0x20000
    v_lshrrev_b32 v{KV_T0}, 2, v{KV_LANE}
    v_mul_u32_u24 v{KV_WG}, 1280, v{KV_T0}
    v_and_b32 v{KV_T0}, 3, v{KV_LANE}
    v_lshl_add_u32 v{KV_WG}, v{KV_T0}, 4, v{KV_WG}
    s_sub_u32 s{K_T2}, s{K_I}, 1
    s_max_i32 s{K_T2}, s{K_T2}, 0
    ''')
    for j in range(3):
        a(f'''
        s_add_u32 s60, s{K_I}, {j}
        s_sub_u32 s60, s60, 1
        s_max_i32 s60, s60, 0
        s_min_u32 s60, s60, 19
        s_mul_i32 s60, s60, {32*1280}
        s_mul_i32 s61, s{K_WAVE}, 320
        s_add_u32 s60, s60, s61
        ''')
        for nb in range(5):
            for hf in range(2):
                a(f'''
                s_add_u32 m0, s{K_LB}, {nb*6144+(j*2+hf)*1024}
                s_add_u32 s{K_T}, s60, {hf*16*1280+nb*64}
                buffer_load_dwordx4 v{KV_WG}, s[36:39], s{K_T} offen lds
                ''')
    a('s_waitcnt vmcnt(0) lgkmcnt(0)\ns_barrier')
    for j in range(3):
        if j==0: a(f'v_add_u32 v{KV_T0}, {KVM_LDS}, v{KV_LIN}')
        a(f'ds_read_b128 v[{KV_B+8*j}:{KV_B+8*j+3}], v{KV_T0} offset:{j*2048}\nds_read_b128 v[{KV_B+8*j+4}:{KV_B+8*j+7}], v{KV_T0} offset:{j*2048+1024}')
    MA=KV_ACC
    for nb in range(5):
        for b in range(6):
            f=KV_FA+4*(b&1)
            a(f'ds_read_b64_tr_b16 v[{f}:{f+1}], v{KV_TRP} offset:{nb*6144+b*1024}\nds_read_b64_tr_b16 v[{f+2}:{f+3}], v{KV_TRP} offset:{nb*6144+b*1024+512}')
            a('s_waitcnt lgkmcnt(0)')
            d=MA+16*(nb&1)
            c='0' if b==0 else f'v[{d}:{d+15}]'
            a(f'v_mfma_f32_32x32x16_bf16 v[{d}:{d+15}], v[{f}:{f+3}], v[{KV_B+4*b}:{KV_B+4*b+3}], {c}')
        a('s_nop 7\ns_nop 7')
        d=MA+16*(nb&1); p=KV_RD
        for k in range(8): a(f'v_cvt_pk_bf16_f32 v{p+k}, v{d+2*k}, v{d+2*k+1}')
        a('s_nop 1')
        for x in swap_block(p): a(x)
        if nb==0:
            a(f'''
            v_and_b32 v{KV_T0}, 31, v{KV_LANE}
            v_mul_u32_u24 v{KV_ST}, 1280, v{KV_T0}
            v_lshl_add_u32 v{KV_ST}, v{KV_HALF}, 4, v{KV_ST}
            s_mul_i32 s60, s{K_I}, {32*1280}
            s_mul_i32 s61, s{K_WAVE}, 320
            s_add_u32 s60, s60, s61
            s_add_u32 s60, s60, {WS_M}
            ''')
        a(f'buffer_store_dwordx4 v[{p}:{p+3}], v{KV_ST}, {SRD_WS}, s60 offen offset:{nb*64} {gemm_store_flags()}')
        a(f'buffer_store_dwordx4 v[{p+4}:{p+7}], v{KV_ST}, {SRD_WS}, s60 offen offset:{nb*64+32} {gemm_store_flags()}')
KVM_LDS=131072
LDS_KV=131072+6144
STORE_FLAGS=''
def gemm_store_flags(): return STORE_FLAGS

def ascale_item(a, s_seg, ldf=''):
    T0=1;T1=2;QO=3;ZO=4;OO=5
    Q=8
    Z=48
    F=128
    DN=208
    a(f'''
    v_and_b32 v{T0}, 31, v0
    v_lshrrev_b32 v{T1}, 5, v0                   ; part
    v_mul_u32_u24 v{QO}, {5*65536}, v{T1}
    v_lshl_add_u32 v{QO}, v{T0}, 5, v{QO}
    v_mul_u32_u24 v{ZO}, 320, v{T1}
    v_mul_u32_u24 v{OO}, 1280, v{T0}
    v_mul_u32_u24 v{T1}, 160, v{T1}
    v_add_u32 v{OO}, v{OO}, v{T1}
    s_lshl_b32 s51, s{s_seg}, 10
    s_add_u32 s51, s51, {WS_QA}
    ''')
    for k in range(5):
        a(f's_add_u32 s52, s51, {k*65536}')
        a(f'buffer_load_dwordx4 v[{Q+8*k}:{Q+8*k+3}], v{QO}, {SRD_WS}, s52 offen {ldf}')
        a(f'buffer_load_dwordx4 v[{Q+8*k+4}:{Q+8*k+7}], v{QO}, {SRD_WS}, s52 offen offset:16 {ldf}')
    a(f's_mov_b32 s52, {WS_Z}')
    for k in range(20): a(f'buffer_load_dwordx4 v[{Z+4*k}:{Z+4*k+3}], v{ZO}, {SRD_WS}, s52 offen offset:{16*k} {ldf}')
    a('s_waitcnt vmcnt(0)')
    for k in range(40):
        a(f'v_lshlrev_b32 v{F+2*k}, 16, v{Q+k}\nv_and_b32 v{F+2*k+1}, 0xffff0000, v{Q+k}')
    for h in range(4):
        d=DN+h
        a(f'v_mov_b32 v{d}, 0x358637bd')
        for k in range(20): a(f'v_fmac_f32 v{d}, v{F+20*h+k}, v{Z+20*h+k}')
        a(f'v_rcp_f32 v{d}, v{d}')
    a('s_nop 0')
    for h in range(4):
        for k in range(20): a(f'v_mul_f32 v{F+20*h+k}, v{F+20*h+k}, v{DN+h}')
    for k in range(40): a(f'v_cvt_pk_bf16_f32 v{Q+k}, v{F+2*k}, v{F+2*k+1}')
    a(f's_mul_i32 s52, s{s_seg}, {32*1280}\ns_add_u32 s52, s52, {WS_PQ}')
    for k in range(10): a(f'buffer_store_dwordx4 v[{Q+4*k}:{Q+4*k+3}], v{OO}, {SRD_WS}, s52 offen offset:{16*k} {gemm_store_flags()}')
```

```python
from common import *
SRD_WS='s[40:43]'; SRD_A='s[32:35]'
R_WAVE=48; R_G=49; R_I=50; R_H=51; R_JJ=52; R_STEP=53; R_NT=54
R_SL0=55; R_SL1=56; R_SL2=57; R_SL3=58
R_SG0=59; R_SG2=60
R_T=61; R_T2=62; R_T3=63; R_SPIN=64; R_CT=65
R_KX=66; R_CXO=67; R_UM=68; R_KM=69
R_MLO=76; R_MHI=77
R_KMLO=78; R_KMHI=79
R_SST=82; R_GST=84; R_MST=85; R_GLD=86
R_PAR=87; R_CSC=88; R_CT0=89; R_CT1=90; R_CT2=91; R_XLB=92
R_VO=30
R_G0=31; R_G1=74; R_G2=75
R_SI=80
R_PFL=81
V_UG=2
V_KXL=100
V_LANE=1; V_LIN=3; V_RED=4; V_SP=5; V_SLD=6; V_SLDM=7; V_MST=8; V_GLD=9; V_KXO=10; V_CO=11; V_UO=12; V_KMO=13; V_LINW=14
V_T0=15; V_T1=16; V_T2=17; V_T3=18; V_IDX=19; V_NEG1=20
V_A=24
V_U=24; V_SR=36; V_O=36; V_E=48
V_D=64; V_SM=64; V_MX=68; V_MX2=69
V_TW=76; V_TR=77; V_TWK=78; V_TRK=79; V_SUM=80; V_SUM2=81; V_SPM=82
V_RD=84; V_VF=84
V_KXN=100
V_Q=108; V_K=114; V_KX=120
V_P=128; V_SO=136
V_C=140; V_CN=152
V_UP=164
V_WO=184
def wqk(tile,st): return (tile*10+st)*8
def wo(ctk,st): return V_WO+(ctk*3+st)*8
LDS_M=0
LDS_T=10240
LDS_R2=13824
LDS_U=26112
LDS_PF=32768
LDS_STG=32768
LDS_REC=LDS_STG+4*20480
LOC=''
KM_FLAGS=''
SPIN_BUDGET=300000
PROF=False
NPT=8
DELAY_M=0; DELAY_S=0; DELAY_G=0
PARX=0; PF_POS='G'; RS_POS='G'; NOADV=False; NOPF=False; NORS=False; NOST=False

PSETS={'0':['Msucc','bar1b','Spub','SVsucc','bar2','Gpub','Gsucc','end'],
       'A':['Msucc','bcast','smf','bar1b','Spub','SVsucc','Gsucc','end'],
       'B':['Msucc','Spub','SVsucc','Pready','PG','bar2','Gsucc','end']}
PSET='0'
PNAMES={0:'Msucc',1:'bar1b',2:'Spub',3:'SVsucc',4:'bar2',5:'Gpub',6:'Gsucc',7:'end'}
def pt(a,k):
    if not PROF: return
    name=PNAMES.get(k,k)
    L=PSETS[PSET]
    if name not in L: return
    i=L.index(name)
    a(f's_memtime s[{4+2*i}:{5+2*i}]')
def pt_acc(a):
    if not PROF: return
    a('s_waitcnt lgkmcnt(0)')
    a(f's_sub_u32 s72, s4, s71\ns_add_u32 s94, s94, s72')
    for k in range(1,NPT):
        a(f's_sub_u32 s72, s{4+2*k}, s{4+2*(k-1)}\ns_add_u32 s{94+k}, s{94+k}, s72')
    a(f's_mov_b32 s71, s{4+2*(NPT-1)}')
def dump_prof(a):
    if not PROF: return
    for k in range(8):
        a(f"""
        s_lshl_b32 s72, s2, 8
        s_mul_i32 s73, s{R_WAVE}, 32
        s_add_u32 s72, s72, s73
        s_add_u32 s72, s72, {WS_TS+128+k*4}
        v_mov_b32 v15, s{94+k}
        s_mov_b64 exec, 1
        buffer_store_dword v15, off, {SRD_WS}, s72
        s_mov_b64 exec, -1
        """)
def poll_tail(a, L):
    D=a.lab('PD')
    a(f'''
    s_cbranch_vccz {D}
    s_sub_u32 s{R_SPIN}, s{R_SPIN}, 1
    s_cbranch_scc0 {L}
    s_mov_b32 s{R_SPIN}, 0
    {D}:
    ''')
def maxchain(a, regs):
    regs=list(regs)
    cur=[V_T0,V_T1]; first=[True,True]; k=0; i=0
    while i<len(regs):
        t=cur[k&1]
        if first[k&1]:
            if len(regs)-i>=3: a(f'v_max3_u32 v{t}, v{regs[i]}, v{regs[i+1]}, v{regs[i+2]}'); i+=3
            elif len(regs)-i==2: a(f'v_max_u32 v{t}, v{regs[i]}, v{regs[i+1]}'); i+=2
            else: a(f'v_mov_b32 v{t}, v{regs[i]}'); i+=1
            first[k&1]=False
        else:
            if len(regs)-i>=2: a(f'v_max3_u32 v{t}, v{regs[i]}, v{regs[i+1]}, v{t}'); i+=2
            else: a(f'v_max_u32 v{t}, v{regs[i]}, v{t}'); i+=1
        k+=1
    if not first[1]: a(f'v_max_u32 v{V_T0}, v{V_T0}, v{V_T1}')
    a(f'v_cmp_eq_u32 vcc, -1, v{V_T0}')

def measure_parity(a):
    L=a.lab('MP')
    a(f'''
    v_cmp_eq_u32 vcc, 0, v0
    s_and_saveexec_b64 s[72:73], vcc
    s_cbranch_execz {L}
    v_mov_b32 v1, 0
    s_mov_b32 s74, {WS_XG+XG_PROBE}
    s_add_u32 s75, s74, 8192
    buffer_store_dword v1, off, {SRD_WS}, s74 sc1
    buffer_store_dword v1, off, {SRD_WS}, s75 sc1
    s_waitcnt vmcnt(0)
    ''')
    for k,reg in ((0,74),(1,75)):
        a('s_memtime s[76:77]\ns_waitcnt lgkmcnt(0)')
        for _ in range(6): a(f'buffer_store_dword v1, off, {SRD_WS}, s{reg} sc1\ns_waitcnt vmcnt(0)')
        a(f's_memtime s[78:79]\ns_waitcnt lgkmcnt(0)\ns_sub_u32 s{80+k}, s78, s76')
    a(f'''
    s_cmp_gt_u32 s81, s80
    s_cselect_b32 s82, 2, 1
    v_mov_b32 v1, s82
    s_mov_b32 s74, 68
    buffer_store_dword v1, off, s[44:47], s74 sc1
    v_mov_b32 v2, s80
    s_mov_b32 s74, 72
    buffer_store_dword v2, off, s[44:47], s74 sc1
    v_mov_b32 v2, s81
    s_mov_b32 s74, 76
    buffer_store_dword v2, off, s[44:47], s74 sc1
    s_waitcnt vmcnt(0)
    v_mov_b32 v1, 1
    s_mov_b32 s74, 64
    buffer_atomic_add v1, off, s[44:47], s74
    s_waitcnt vmcnt(0)
    {L}:
    s_mov_b64 exec, s[72:73]
    ''')
XG_PROBE=4*XG_SLOT

def g_offsets(a):
    a(f'''
    s_lshr_b32 s{R_T}, s{R_CT}, 1
    s_lshl_b32 s{R_T}, s{R_T}, 14
    s_and_b32 s{R_T2}, s{R_CT}, 1
    s_lshl_b32 s{R_T2}, s{R_T2}, 12
    s_add_u32 s{R_GLD}, s{R_T}, s{R_T2}
    s_lshl_b32 s{R_T2}, s{R_PAR}, 13
    s_add_u32 s{R_GLD}, s{R_GLD}, s{R_T2}
    s_lshl_b32 s{R_T2}, s{R_G}, 9
    s_add_u32 s{R_GST}, s{R_GLD}, s{R_T2}
    ''')
    for CT,RG in ((R_CT0,R_G0),(R_CT1,R_G1),(R_CT2,R_G2)):
        a(f'''
        s_lshr_b32 s{R_T}, s{CT}, 1
        s_lshl_b32 s{R_T}, s{R_T}, 14
        s_and_b32 s{R_T2}, s{CT}, 1
        s_lshl_b32 s{R_T2}, s{R_T2}, 12
        s_add_u32 s{RG}, s{R_T}, s{R_T2}
        s_lshl_b32 s{R_T2}, s{R_PAR}, 13
        s_add_u32 s{RG}, s{RG}, s{R_T2}
        s_lshl_b32 s{R_T2}, s{R_G}, 9
        s_add_u32 s{RG}, s{RG}, s{R_T2}
        ''')

def rec_setup(a):
    a(f'''
    v_and_b32 v{V_LANE}, 63, v0
    v_lshrrev_b32 v{V_T0}, 6, v0
    s_nop 0
    v_readfirstlane_b32 s{R_WAVE}, v{V_T0}
    s_lshr_b32 s{R_T}, s{R_I}, 2
    s_lshl_b32 s{R_H}, s{R_G}, 2
    s_add_u32 s{R_H}, s{R_H}, s{R_T}
    s_and_b32 s{R_JJ}, s{R_I}, 3
    s_mov_b32 s{R_CT0}, s{R_I}
    s_add_u32 s{R_CT1}, s{R_I}, 16
    s_add_u32 s{R_CT2}, s{R_I}, 32
    s_cmp_lt_u32 s{R_I}, 8
    s_cselect_b32 s{R_NT}, 3, 2
    s_cselect_b32 s{R_CT2}, s{R_CT2}, s{R_CT1}
    s_lshl_b32 s{R_CT}, s{R_WAVE}, 4
    s_add_u32 s{R_CT}, s{R_CT}, s{R_I}
    s_mov_b32 s{R_SPIN}, {SPIN_BUDGET}
    v_lshrrev_b32 v{V_T1}, 4, v{V_LANE}
    v_and_b32 v{V_T2}, 15, v{V_LANE}
    v_and_b32 v{V_T3}, 7, v{V_LANE}
    v_bfe_u32 v{V_T0}, v{V_LANE}, 3, 1
    v_lshlrev_b32 v{V_LIN}, 4, v{V_LANE}
    s_lshl_b32 s{R_T}, s{R_WAVE}, 10
    v_add_u32 v{V_LINW}, s{R_T}, v{V_LIN}
    v_and_b32 v{V_RED}, 0x37, v{V_LANE}
    v_lshlrev_b32 v{V_RED}, 4, v{V_RED}
    v_lshl_add_u32 v{V_RED}, v{V_T0}, 11, v{V_RED}
    v_lshl_add_u32 v{V_SP}, v{V_T1}, 3, v{V_T3}
    v_lshlrev_b32 v{V_SPM}, 3, v{V_SP}
    v_lshlrev_b32 v{V_SP}, 4, v{V_SP}
    s_mul_i32 s{R_T}, s{R_WAVE}, 5120
    s_add_u32 s{R_T}, s{R_T}, {XL_S}
    v_lshlrev_b32 v{V_SLD}, 9, v{V_T0}
    v_add_u32 v{V_SLD}, v{V_SLD}, v{V_SP}
    v_add_u32 v{V_SLD}, 256, v{V_SLD}
    v_add_u32 v{V_SLD}, s{R_T}, v{V_SLD}
    v_lshl_add_u32 v{V_SLDM}, v{V_T0}, 2, v{V_SPM}
    v_add_u32 v{V_SLDM}, s{R_T}, v{V_SLDM}
    ; V_MST = (2r + (g4>>1))*16 + (g4&1)*8
    v_lshrrev_b32 v{V_MST}, 1, v{V_T1}
    v_lshl_add_u32 v{V_MST}, v{V_T3}, 1, v{V_MST}
    v_lshlrev_b32 v{V_MST}, 4, v{V_MST}
    v_and_b32 v{V_GLD}, 1, v{V_T1}
    v_lshl_add_u32 v{V_MST}, v{V_GLD}, 3, v{V_MST}
    v_lshlrev_b32 v{V_GLD}, 11, v{V_T0}
    v_add_u32 v{V_GLD}, v{V_GLD}, v{V_SP}
    ; V_KXO
    v_lshrrev_b32 v{V_KXO}, 2, v{V_T2}
    v_lshlrev_b32 v{V_KXO}, 3, v{V_KXO}
    v_and_b32 v{V_CO}, 3, v{V_T2}
    v_add_u32 v{V_KXO}, v{V_KXO}, v{V_CO}
    s_lshl_b32 s{R_T}, s{R_WAVE}, 2
    s_sub_u32 s{R_T}, s{R_T}, 4
    s_max_i32 s{R_T}, s{R_T}, 0
    v_add_u32 v{V_KXO}, s{R_T}, v{V_KXO}
    v_lshlrev_b32 v{V_KXO}, 5, v{V_KXO}
    v_lshl_add_u32 v{V_KXO}, v{V_T1}, 3, v{V_KXO}
    ; V_CO
    v_lshrrev_b32 v{V_CO}, 1, v{V_T1}
    v_lshlrev_b32 v{V_CO}, 9, v{V_CO}
    v_lshl_add_u32 v{V_CO}, v{V_T2}, 5, v{V_CO}
    v_and_b32 v{V_UO}, 1, v{V_T1}
    v_lshl_add_u32 v{V_CO}, v{V_UO}, 4, v{V_CO}
    v_lshlrev_b32 v{V_UO}, 4, v{V_T2}
    v_lshl_add_u32 v{V_UO}, v{V_T1}, 2, v{V_UO}
    v_lshrrev_b32 v{V_KMO}, 2, v{V_T2}
    v_lshlrev_b32 v{V_KMO}, 1, v{V_KMO}
    v_and_b32 v{V_TW}, 1, v{V_T2}
    v_add_u32 v{V_KMO}, v{V_KMO}, v{V_TW}
    v_lshlrev_b32 v{V_KMO}, 5, v{V_KMO}
    v_lshl_add_u32 v{V_KMO}, v{V_T1}, 3, v{V_KMO}
    v_lshlrev_b32 v{V_TW}, 4, v{V_T2}
    v_lshl_add_u32 v{V_TW}, v{V_T1}, 2, v{V_TW}
    v_add_u32 v{V_TW}, {LDS_T}, v{V_TW}                 ; e*16 + g4*4
    v_lshlrev_b32 v{V_TWK}, 5, v{V_T2}
    v_lshl_add_u32 v{V_TWK}, v{V_T1}, 3, v{V_TWK}
    v_add_u32 v{V_TWK}, {LDS_T+1536}, v{V_TWK}          ; e*32 + g4*8
    v_lshrrev_b32 v{V_TR}, 2, v{V_T2}
    v_lshl_add_u32 v{V_TR}, v{V_T1}, 2, v{V_TR}         ; row e = 4g4 + (i>>2)
    v_and_b32 v{V_IDX}, 3, v{V_T2}
    v_lshlrev_b32 v{V_IDX}, 3, v{V_IDX}                  ; chunk*8
    v_lshl_add_u32 v{V_TRK}, v{V_TR}, 5, v{V_IDX}
    v_add_u32 v{V_TRK}, {LDS_T+1536}, v{V_TRK}
    v_lshl_add_u32 v{V_TR}, v{V_TR}, 4, v{V_IDX}
    v_add_u32 v{V_TR}, {LDS_T}, v{V_TR}
    ; V_IDX
    v_and_b32 v{V_IDX}, 1, v{V_LANE}
    v_cmp_eq_u32 vcc, 1, v{V_IDX}
    v_mov_b32 v{V_IDX}, 0x4444
    v_mov_b32 v{V_NEG1}, 0xeeee
    s_nop 0
    v_cndmask_b32 v{V_IDX}, v{V_IDX}, v{V_NEG1}, vcc
    ; masks
    v_cmp_gt_u32 vcc, 8, v{V_T2}
    s_mov_b64 s[{R_MLO}:{R_MHI}], vcc
    v_and_b32 v{V_T0}, 2, v{V_T2}
    v_cmp_eq_u32 vcc, 0, v{V_T0}
    s_mov_b64 s[{R_KMLO}:{R_KMHI}], vcc
    v_mov_b32 v{V_NEG1}, -1
    v_mov_b32 v{V_NEG1+1}, -1
    v_mov_b32 v{V_NEG1+2}, -1
    v_mov_b32 v{V_NEG1+3}, -1
    v_mov_b32 v{V_P+5}, 0
    v_mov_b32 v{V_UP+1}, 0
    v_mov_b32 v{V_UP+3}, 0
    v_mov_b32 v{V_UP+5}, 0
    s_mul_i32 s{R_SST}, s{R_I}, 1280
    s_add_u32 s{R_SST}, s{R_SST}, {XL_S}
    s_cmp_eq_u32 s{R_WAVE}, 1
    s_cselect_b32 s{R_T}, 256, 0
    s_cmp_eq_u32 s{R_WAVE}, 2
    s_cselect_b32 s{R_T}, 768, s{R_T}
    s_add_u32 s{R_SST}, s{R_SST}, s{R_T}
    s_lshr_b32 s{R_T}, s{R_I}, 2
    s_mul_i32 s{R_VO}, s{R_T}, 3072
    s_mul_i32 s{R_T}, s{R_JJ}, 768
    s_add_u32 s{R_VO}, s{R_VO}, s{R_T}
    s_add_u32 s{R_VO}, s{R_VO}, {XL_V}
    s_lshl_b32 s{R_MST}, s{R_CT}, 8
    s_mov_b32 s{R_CSC}, 0x3dd53b95
    s_mul_i32 s{R_SI}, s{R_I}, 1280
    s_add_u32 s{R_SI}, s{R_SI}, {XL_S}
    v_lshrrev_b32 v{V_UG}, 4, v{V_LANE}
    v_mul_u32_u24 v{V_UG}, 655360, v{V_UG}
    v_and_b32 v{V_T0}, 15, v{V_LANE}
    v_lshl_add_u32 v{V_UG}, v{V_T0}, 4, v{V_UG}
    v_mov_b32 v{V_KXL}, v{V_KXO}
    ''')

def rec_load_weights(a, P_WQ,P_WK,P_WV,P_WO):
    a(f'''
    s_mul_i32 s{R_T3}, s{R_WAVE}, 20480
    s_add_u32 s{R_T3}, s{R_T3}, {LDS_STG}
    v_and_b32 v{V_T0}, 15, v{V_LANE}
    v_lshrrev_b32 v{V_T1}, 4, v{V_LANE}
    v_lshrrev_b32 v{V_T2}, 2, v{V_T0}
    v_and_b32 v{V_T0}, 3, v{V_T0}
    v_lshlrev_b32 v{V_T0}, 3, v{V_T0}
    v_lshrrev_b32 v{V_T3}, 1, v{V_T1}
    v_lshlrev_b32 v{V_T3}, 4, v{V_T3}
    v_and_b32 v{V_RD}, 1, v{V_T1}
    v_lshl_add_u32 v{V_T3}, v{V_RD}, 2, v{V_T3}
    v_add_u32 v{V_T3}, v{V_T3}, v{V_T2}
    v_lshl_add_u32 v{V_RD}, v{V_T3}, 5, v{V_T0}
    v_add_u32 v{V_RD}, s{R_T3}, v{V_RD}
    v_lshrrev_b32 v{V_T0}, 1, v{V_LANE}
    v_and_b32 v{V_T1}, 1, v{V_LANE}
    v_lshlrev_b32 v{V_T1}, 4, v{V_T1}
    v_mul_u32_u24 v{V_RD+2}, 12288, v{V_T0}
    v_add_u32 v{V_RD+2}, v{V_RD+2}, v{V_T1}
    v_mul_u32_u24 v{V_RD+3}, 1280, v{V_T0}
    v_add_u32 v{V_RD+3}, v{V_RD+3}, v{V_T1}
    ''')
    TMP=V_RD+4
    def unpack(nst, base_off, dstfn):
        for st in range(nst):
            for hb in range(2):
                o=base_off+(st*64+hb*32)*32
                a(f'ds_read_b64_tr_b16 v[{TMP+4*hb}:{TMP+4*hb+1}], v{V_RD} offset:{o}')
                a(f'ds_read_b64_tr_b16 v[{TMP+4*hb+2}:{TMP+4*hb+3}], v{V_RD} offset:{o+8*32}')
            a('s_waitcnt lgkmcnt(0)')
            for hb in range(2):
                t=TMP+4*hb
                for k,src in enumerate((t,t+2,t+1,t+3)): a(dstfn(st,4*hb+k,src))
    def load_tile(P, colreg, slot):
        a(f'''
        s_mov_b32 s32, s{P}
        s_mov_b32 s33, s{P+1}
        s_mov_b32 s34, {640*6144*2}
        s_mov_b32 s35, 0x20000
        ''')
        for n in range(20):
            a(f'''
            s_add_u32 m0, s{R_T3}, {n*1024}
            s_add_u32 s70, s{colreg}, {n*32*12288}
            buffer_load_dwordx4 v{V_RD+2}, {SRD_A}, s70 offen lds
            ''')
        a('s_waitcnt vmcnt(0)')
        unpack(10,0,lambda st,k,src: f'v_accvgpr_write_b32 a{wqk(slot,st)+k}, v{src}')
    L3=a.lab('W3'); LW=a.lab('WW')
    a(f'''
    s_mul_i32 s{R_T}, s{R_H}, 384
    s_mul_i32 s{R_T2}, s{R_JJ}, 96
    s_add_u32 s{R_T}, s{R_T}, s{R_T2}
    s_cmp_eq_u32 s{R_WAVE}, 3
    s_cbranch_scc1 {L3}
    s_lshl_b32 s{R_T2}, s{R_WAVE}, 5
    s_add_u32 s{R_T}, s{R_T}, s{R_T2}
    ''')
    load_tile(P_WQ,R_T,0)
    load_tile(P_WK,R_T,1)
    a(f's_branch {LW}\n{L3}:')
    load_tile(P_WV,R_T,0)
    a(f's_add_u32 s{R_T}, s{R_T}, 32')
    load_tile(P_WV,R_T,1)
    a(f's_add_u32 s{R_T}, s{R_T}, 32')
    load_tile(P_WV,R_T,2)
    a(f'{LW}:')
    a(f'''
    s_mov_b32 s32, s{P_WO}
    s_mov_b32 s33, s{P_WO+1}
    s_mov_b32 s34, {32*192*640*2}
    s_mov_b32 s35, 0x20000
    s_lshl_b32 s{R_T}, s{R_G}, 2
    s_add_u32 s{R_T}, s{R_T}, s{R_WAVE}
    s_mul_i32 s{R_T}, s{R_T}, {192*1280}
    ''')
    for ctk,CT in enumerate((R_CT0,R_CT1,R_CT2)):
        a(f'''
        s_lshl_b32 s{R_T2}, s{CT}, 5
        s_add_u32 s{R_T2}, s{R_T2}, s{R_T}
        ''')
        for n in range(6):
            a(f'''
            s_add_u32 m0, s{R_T3}, {ctk*6144+n*1024}
            s_add_u32 s70, s{R_T2}, {n*32*1280}
            buffer_load_dwordx4 v{V_RD+3}, {SRD_A}, s70 offen lds
            ''')
    a('s_waitcnt vmcnt(0)')
    for ctk in range(3):
        unpack(3,ctk*6144,lambda st,k,src,c=ctk: f'v_mov_b32 v{wo(c,st)+k}, v{src}')

def slot_regs(a):
    for k,reg in enumerate((R_SL0,R_SL1,R_SL2,R_SL3)):
        a(f'''
        s_add_u32 s{R_T}, s{R_STEP}, {k}
        s_and_b32 s{R_T}, s{R_T}, 3
        s_mul_i32 s{R_T}, s{R_T}, {XL_SLOT}
        s_add_u32 s{reg}, s{R_T}, s{R_XLB}
        ''')
    a(f'''
    s_and_b32 s{R_T}, s{R_STEP}, 3
    s_mul_i32 s{R_SG0}, s{R_T}, {XG_SLOT}
    s_add_u32 s{R_SG0}, s{R_SG0}, {WS_XG}
    s_xor_b32 s{R_T}, s{R_T}, 2
    s_mul_i32 s{R_SG2}, s{R_T}, {XG_SLOT}
    s_add_u32 s{R_SG2}, s{R_SG2}, {WS_XG}
    ''')

def publish_ST(a, data, slot, flags):
    a(f'''
    s_add_u32 s{R_T}, s{slot}, s{R_SST}
    s_mov_b64 exec, s[{R_MLO}:{R_MHI}]
    buffer_store_dwordx4 v[{data}:{data+3}], v{V_SP}, {SRD_WS}, s{R_T} offen {flags}
    s_mov_b64 exec, -1
    ''')
def publish_SM(a, data, slot, flags):
    a(f'''
    s_add_u32 s{R_T}, s{slot}, s{R_SST}
    s_mov_b64 exec, s[{R_MLO}:{R_MHI}]
    buffer_store_dwordx2 v[{data}:{data+1}], v{V_SPM}, {SRD_WS}, s{R_T} offen {flags}
    s_mov_b64 exec, -1
    ''')
def publish_V(a, datas, slot, flags):
    a(f'''
    s_add_u32 s{R_T}, s{R_VO}, s{slot}
    s_mov_b64 exec, s[{R_MLO}:{R_MHI}]
    ''')
    for t in range(3):
        a(f'buffer_store_dwordx2 v[{datas[t]}:{datas[t]+1}], v{V_MST}, {SRD_WS}, s{R_T} offen offset:{t*256} {flags}')
    a('s_mov_b64 exec, -1')
def publish_G(a, data, sg):
    a(f'''
    s_add_u32 s{R_T}, s{sg}, s{R_GST}
    s_mov_b64 exec, s[{R_MLO}:{R_MHI}]
    buffer_store_dwordx4 v[{data}:{data+3}], v{V_SP}, {SRD_WS}, s{R_T} offen sc1
    s_mov_b64 exec, -1
    ''')
def publish_M(a, data, slot, flags):
    a(f'''
    s_add_u32 s{R_T}, s{slot}, s{R_MST}
    s_mov_b64 exec, s[{R_MLO}:{R_MHI}]
    buffer_store_dwordx2 v[{data}:{data+1}], v{V_MST}, {SRD_WS}, s{R_T} offen {flags}
    s_mov_b64 exec, -1
    ''')
def resets(a, sS, sV, sG, sM):
    N=V_NEG1
    a(f"""
    s_mov_b64 exec, s[{R_MLO}:{R_MHI}]
    s_add_u32 s{R_T}, s{sS}, s{R_SI}
    buffer_store_dwordx2 v[{N}:{N+1}], v{V_SPM}, {SRD_WS}, s{R_T} offen {LOC}
    buffer_store_dwordx4 v[{N}:{N+3}], v{V_SP}, {SRD_WS}, s{R_T} offen offset:256 {LOC}
    buffer_store_dwordx4 v[{N}:{N+3}], v{V_SP}, {SRD_WS}, s{R_T} offen offset:768 {LOC}
    s_add_u32 s{R_T}, s{R_VO}, s{sV}
    """)
    for t in range(3):
        a(f'buffer_store_dwordx2 v[{N}:{N+1}], v{V_MST}, {SRD_WS}, s{R_T} offen offset:{t*256} {LOC}')
    for CT,RG in ((R_CT0,R_G0),(R_CT1,R_G1),(R_CT2,R_G2)):
        a(f"""
        s_add_u32 s{R_T}, s{sG}, s{RG}
        buffer_store_dwordx4 v[{N}:{N+3}], v{V_SP}, {SRD_WS}, s{R_T} offen sc1
        s_lshl_b32 s{R_T}, s{CT}, 8
        s_add_u32 s{R_T}, s{R_T}, s{sM}
        buffer_store_dwordx2 v[{N}:{N+1}], v{V_MST}, {SRD_WS}, s{R_T} offen {LOC}
        """)
    a('s_mov_b64 exec, -1')
def pf_groups(ldf, ldsbase, blocks):
    out=[]
    for b in blocks:
        if b<12:
            w,k=divmod(b,3); CT=(R_CT0,R_CT1,R_CT2)[k]
            out.append([f's_lshl_b32 s{R_T}, s{CT}, 16', f's_add_u32 s{R_T}, s{R_T}, s{R_CXO}', f's_add_u32 s{R_T}, s{R_T}, {w*40*65536}',
                        f's_add_u32 m0, s{ldsbase}, {b*1024}', 's_nop 0',
                        f'buffer_load_dwordx4 v{V_CO}, {SRD_WS}, s{R_T} offen {ldf} lds'])
        else:
            t=b-12
            out.append([f's_add_u32 m0, s{ldsbase}, {b*1024}', f's_add_u32 s{R_T}, s{R_KX}, {t*65536}',
                        f'buffer_load_dwordx4 v{V_LIN}, {SRD_WS}, s{R_T} offen {ldf} lds'])
    return out
def pf_advance(a):
    if not NOADV: a(f"""
    s_add_u32 s{R_KX}, s{R_KX}, 1024
    s_add_u32 s{R_CXO}, s{R_CXO}, 1024
    """)
R_PFN=83
PFB=[[0,1,2,3,4],[5,6,7,8,9],[10,11,12,13,14]]

def rec_main(a, P_MEM, ldf=''):
    a(f"""
    s_mul_i32 s{R_XLB}, s{R_G}, {XL_GRP}
    s_add_u32 s{R_XLB}, s{R_XLB}, {WS_XL}
    """)
    LW=a.lab('PW')
    a(f"""
    s_mov_b32 s{R_T}, 68
    {LW}:
    buffer_load_dword v{V_T0}, off, s[44:47], s{R_T} sc1
    s_waitcnt vmcnt(0)
    v_cmp_eq_u32 vcc, 0, v{V_T0}
    """)
    poll_tail(a,LW)
    a(f"""
    v_readfirstlane_b32 s{R_PAR}, v{V_T0}
    s_nop 3
    s_max_u32 s{R_PAR}, s{R_PAR}, 1
    s_sub_u32 s{R_PAR}, s{R_PAR}, 1
    s_xor_b32 s{R_PAR}, s{R_PAR}, {PARX}
    """)
    g_offsets(a)
    LNI=a.lab('NI')
    a(f's_cmp_eq_u32 s{R_WAVE}, 3\ns_cbranch_scc0 {LNI}')
    for k in range(4):
        a(f"""
        s_mov_b32 s93, s{R_XLB}
        s_add_u32 s93, s93, {k*XL_SLOT}
        s_mov_b32 s94, {WS_XG+k*XG_SLOT}
        """)
        resets(a,93,93,94,93)
    a(f'{LNI}:')
    a('s_waitcnt vmcnt(0)\ns_barrier')
    LW=a.lab('SB'); LX=a.lab('SBX')
    a(f"""
    s_cmp_eq_u32 s{R_WAVE}, 0
    s_cbranch_scc0 {LX}
    s_mov_b64 exec, 1
    v_mov_b32 v{V_T0}, 1
    s_mov_b32 s{R_T}, {64}
    buffer_atomic_add v{V_T0}, off, s[44:47], s{R_T}
    {LW}:
    buffer_load_dword v{V_T0}, off, s[44:47], s{R_T} sc1
    s_waitcnt vmcnt(0)
    v_cmp_gt_u32 vcc, 129, v{V_T0}
    """)
    poll_tail(a,LW)
    a(f"""
    s_mov_b64 exec, -1
    {LX}:
    s_barrier
    """)
    a(f"""
    s_mul_i32 s{R_T}, s{R_H}, 12
    s_mul_i32 s{R_T2}, s{R_JJ}, 3
    s_add_u32 s{R_T}, s{R_T}, s{R_T2}
    s_lshl_b32 s{R_KX}, s{R_T}, 16
    s_add_u32 s{R_KX}, s{R_KX}, {WS_KX}
    s_lshl_b32 s{R_KM}, s{R_T}, 14
    s_add_u32 s{R_KM}, s{R_KM}, {WS_KM}
    s_lshl_b32 s{R_T}, s{R_G}, 2
    s_mul_i32 s{R_CXO}, s{R_T}, {40*65536}
    s_add_u32 s{R_CXO}, s{R_CXO}, {WS_CX}
    s_mul_i32 s{R_UM}, s{R_T}, {40*16384}
    s_add_u32 s{R_UM}, s{R_UM}, {WS_UM}
    s_mov_b32 s{R_STEP}, 0
    """)
    LNI=a.lab('NI')
    a(f's_cmp_eq_u32 s{R_WAVE}, 3\ns_cbranch_scc0 {LNI}')
    a(f's_mov_b32 s93, {LDS_PF}')
    for g in pf_groups(ldf,93,range(15)):
        for x in g: a(x)
    a(f'{LNI}:')
    pf_advance(a)
    MB=V_RD
    a(f"""
    s_mov_b32 s32, s{P_MEM}
    s_mov_b32 s33, s{P_MEM+1}
    s_mov_b32 s34, 10240
    s_mov_b32 s35, 0x20000
    v_bfe_u32 v{V_T0}, v{V_LANE}, 1, 3
    v_mul_u32_u24 v{V_T0}, 1280, v{V_T0}
    v_lshrrev_b32 v{V_T1}, 4, v{V_LANE}
    v_lshl_add_u32 v{V_T0}, v{V_T1}, 5, v{V_T0}
    v_and_b32 v{V_T1}, 1, v{V_LANE}
    v_lshl_add_u32 v{V_T0}, v{V_T1}, 4, v{V_T0}
    s_lshl_b32 s{R_T}, s{R_WAVE}, 7
    """)
    for q in range(4):
        a(f'buffer_load_dwordx4 v[{MB+4*q}:{MB+4*q+3}], v{V_T0}, {SRD_A}, s{R_T} offen offset:{q*384}')
    a('s_waitcnt vmcnt(0)\ns_barrier')
    slot_regs(a)
    if PROF:
        for k in range(8): a(f's_mov_b32 s{94+k}, 0')
        a('s_memtime s[72:73]\ns_waitcnt lgkmcnt(0)\ns_mov_b32 s71, s72')
    a('s_branch REC_A2\nREC_LOOP:')
    LP=a.lab('PM'); LP0=a.lab('PM0'); LM3=a.lab('M3')
    a(f's_cmp_eq_u32 s{R_WAVE}, 3\ns_cbranch_scc1 REC_A2')
    if DELAY_M: a(f's_sleep {DELAY_M}')
    a(f"""
    s_add_u32 s{R_T2}, s{R_SL0}, 6144
    s_add_u32 s{R_T3}, s{R_SL0}, 9216
    s_cmp_eq_u32 s{R_WAVE}, 0
    s_cbranch_scc1 {LP0}
    {LP}:
    buffer_load_dwordx4 v[{MB}:{MB+3}], v{V_LINW}, {SRD_WS}, s{R_SL0} offen sc1
    buffer_load_dwordx4 v[{MB+4}:{MB+7}], v{V_LINW}, {SRD_WS}, s{R_SL0} offen offset:3072 sc1
    buffer_load_dwordx4 v[{MB+8}:{MB+11}], v{V_LINW}, {SRD_WS}, s{R_T2} offen sc1
    s_waitcnt vmcnt(0)
    """)
    maxchain(a,[MB+1,MB+3,MB+5,MB+7,MB+9,MB+11])
    poll_tail(a,LP)
    a(f"""
    s_branch REC_A2
    {LP0}:
    buffer_load_dwordx4 v[{MB}:{MB+3}], v{V_LINW}, {SRD_WS}, s{R_SL0} offen sc1
    buffer_load_dwordx4 v[{MB+4}:{MB+7}], v{V_LINW}, {SRD_WS}, s{R_SL0} offen offset:3072 sc1
    buffer_load_dwordx4 v[{MB+8}:{MB+11}], v{V_LINW}, {SRD_WS}, s{R_T2} offen sc1
    buffer_load_dwordx4 v[{MB+12}:{MB+15}], v{V_LINW}, {SRD_WS}, s{R_T3} offen sc1
    s_waitcnt vmcnt(0)
    """)
    maxchain(a,[MB+1,MB+3,MB+5,MB+7,MB+9,MB+11,MB+13,MB+15])
    poll_tail(a,LP0)
    a('REC_A2:')
    pt(a,0)
    LNW=a.lab('NW')
    a(f"""
    s_cmp_eq_u32 s{R_WAVE}, 3
    s_cbranch_scc1 {LNW}
    ds_write_b128 v{V_LINW}, v[{MB}:{MB+3}] offset:{LDS_M}
    ds_write_b128 v{V_LINW}, v[{MB+4}:{MB+7}] offset:{LDS_M+3072}
    ds_write_b128 v{V_LINW}, v[{MB+8}:{MB+11}] offset:{LDS_M+6144}
    s_cmp_eq_u32 s{R_WAVE}, 0
    s_cbranch_scc0 {LNW}
    ds_write_b128 v{V_LINW}, v[{MB+12}:{MB+15}] offset:{LDS_M+9216}
    {LNW}:
    """)
    for i in range(12): a(f'v_mov_b32 v{V_D+i}, 0')
    a(f"""
    s_and_b32 s{R_PFL}, s{R_STEP}, 1
    s_mul_i32 s{R_PFL}, s{R_PFL}, 15360
    s_add_u32 s{R_PFL}, s{R_PFL}, {LDS_PF}
    s_xor_b32 s{R_PFN}, s{R_STEP}, 1
    s_and_b32 s{R_PFN}, s{R_PFN}, 1
    s_mul_i32 s{R_PFN}, s{R_PFN}, 15360
    s_add_u32 s{R_PFN}, s{R_PFN}, {LDS_PF}
    s_mul_i32 s{R_T}, s{R_WAVE}, 3072
    s_add_u32 s{R_T}, s{R_T}, s{R_PFL}
    v_add_u32 v{V_T2}, s{R_T}, v{V_LIN}
    v_add_u32 v{V_T3}, s{R_PFL}, v{V_KXL}
    s_waitcnt lgkmcnt(0)
    s_barrier
    """)
    pt(a,'bcast')
    for st in range(10): a(f'ds_read_b128 v[{V_A+4*st}:{V_A+4*st+3}], v{V_LIN} offset:{LDS_M+st*1024}')
    for k in range(3): a(f'ds_read_b128 v[{V_C+4*k}:{V_C+4*k+3}], v{V_T2} offset:{k*1024}')
    for t in range(3): a(f'ds_read_b64 v[{V_KX+2*t}:{V_KX+2*t+1}], v{V_T3} offset:{(12+t)*1024}')
    L3=a.lab('A3'); LJ=a.lab('AJ'); LV=a.lab('AV'); LX1=a.lab('AX'); LS=a.lab('AS'); LB=a.lab('AB')
    def smf(nt, groups=()):
        groups=list(groups); gi=0
        for st in range(10):
            a(f's_waitcnt lgkmcnt({15-st})')
            for t in range(nt):
                r=wqk(t,st)
                a(f'v_smfmac_f32_16x16x64_bf16 v[{V_D+4*t}:{V_D+4*t+3}], v[{V_A+4*st}:{V_A+4*st+3}], a[{r}:{r+7}], v{V_IDX}')
            if st%2==1 and gi<len(groups):
                for x in groups[gi]: a(x)
                gi+=1
        assert gi==len(groups)
    def fold(nt, base):
        for t in range(nt):
            d=base+4*t
            a(f'v_add_f32 v{d}, v{d}, v{d+1}\nv_add_f32 v{d+2}, v{d+2}, v{d+3}')
    a(f's_cmp_eq_u32 s{R_WAVE}, 3\ns_cbranch_scc1 {L3}')
    LA=[a.lab('PA') for _ in range(3)]; LAE=a.lab('PAE')
    if NOPF:
        smf(2)
    else:
        a(f's_cmp_eq_u32 s{R_WAVE}, 1\ns_cbranch_scc1 {LA[1]}\ns_cmp_eq_u32 s{R_WAVE}, 2\ns_cbranch_scc1 {LA[2]}')
        for w in range(3):
            a(f'{LA[w]}:')
            smf(2, pf_groups(ldf,R_PFN,PFB[w]))
            if w<2: a(f's_branch {LAE}')
        a(f'{LAE}:')
    pt(a,'smf')
    a(f"""
    s_lshl_b32 s{R_T}, s{R_WAVE}, 8
    v_add_u32 v{V_T0}, s{R_T}, v{V_TW}
    s_lshl_b32 s{R_T}, s{R_WAVE}, 9
    v_add_u32 v{V_T1}, s{R_T}, v{V_TWK}
    s_nop 2
    """)
    fold(2,V_D)
    a(f"""
    v_cvt_pk_bf16_f32 v{V_D}, v{V_D}, v{V_D+2}
    v_cvt_pk_bf16_f32 v{V_D+4}, v{V_D+4}, v{V_D+6}
    ds_write_b32 v{V_T0}, v{V_D}
    ds_write_b32 v{V_T1}, v{V_D+4}
    s_branch {LJ}
    {L3}:
    """)
    smf(3)
    pt(a,'smf')
    a('s_nop 6')
    fold(3,V_D)
    for t in range(3): a(f'v_cvt_pk_bf16_f32 v{V_D+4*t}, v{V_D+4*t}, v{V_D+4*t+2}')
    for t in range(3): a(f'ds_write_b32 v{V_TW}, v{V_D+4*t} offset:{768+t*256}')
    a(f'{LJ}:')
    a('s_waitcnt lgkmcnt(0)\ns_barrier')
    pt(a,1)
    a(f's_cmp_eq_u32 s{R_WAVE}, 3\ns_cbranch_scc1 {LV}')
    for t in range(3): a(f'ds_read_b64_tr_b16 v[{V_Q+2*t}:{V_Q+2*t+1}], v{V_TR} offset:{t*256}')
    a(f's_cmp_eq_u32 s{R_WAVE}, 0\ns_cbranch_scc0 {LX1}')
    for t in range(3): a(f'ds_read_b64_tr_b16 v[{V_K+2*t}:{V_K+2*t+1}], v{V_TRK} offset:{t*512}')
    a('s_waitcnt lgkmcnt(0)')
    for t in range(3):
        c='0' if t==0 else f'v[{V_SO}:{V_SO+3}]'
        a(f'v_mfma_f32_16x16x16_bf16 v[{V_SO}:{V_SO+3}], v[{V_K+2*t}:{V_K+2*t+1}], v[{V_Q+2*t}:{V_Q+2*t+1}], {c}')
    for i in range(7): a(f'v_mov_b32 v{V_U+i}, 0')
    publish_SM(a,V_SO,R_SL0,LOC)
    for i in range(7,12): a(f'v_mov_b32 v{V_U+i}, 0')
    a(f's_branch {LB}\n{LX1}:')
    a('s_waitcnt lgkmcnt(0)')
    for t in range(3):
        c='0' if t==0 else f'v[{V_SO}:{V_SO+3}]'
        a(f'v_mfma_f32_16x16x16_bf16 v[{V_SO}:{V_SO+3}], v[{V_KX+2*t}:{V_KX+2*t+1}], v[{V_Q+2*t}:{V_Q+2*t+1}], {c}')
    for i in range(7): a(f'v_mov_b32 v{V_U+i}, 0')
    publish_ST(a,V_SO,R_SL0,LOC)
    for i in range(7,12): a(f'v_mov_b32 v{V_U+i}, 0')
    a(f's_branch {LB}\n{LV}:')
    for t in range(3): a(f'ds_read_b64_tr_b16 v[{V_Q+2*t}:{V_Q+2*t+1}], v{V_TR} offset:{768+t*256}')
    a('s_waitcnt lgkmcnt(0)')
    publish_V(a,[V_Q,V_Q+2,V_Q+4],R_SL0,LOC)
    for i in range(12): a(f'v_mov_b32 v{V_U+i}, 0')
    a(f'{LB}:')
    pt(a,2)
    LP=a.lab('PS')
    a(f"""
    s_mul_i32 s{R_T2}, s{R_WAVE}, 3072
    s_add_u32 s{R_T2}, s{R_T2}, {XL_V}
    s_add_u32 s{R_T2}, s{R_T2}, s{R_SL0}
    s_cmp_eq_u32 s{R_STEP}, 63
    s_cbranch_scc1 REC_LAST
    """)
    if DELAY_S: a(f's_sleep {DELAY_S}')
    a(f'{LP}:')
    SR=V_SR; SM=V_SM
    for st in range(3):
        a(f'buffer_load_dwordx4 v[{V_VF+4*st}:{V_VF+4*st+3}], v{V_LIN}, {SRD_WS}, s{R_T2} offen offset:{st*1024} sc1')
    for p in range(4):
        a(f'buffer_load_dwordx4 v[{SR+4*p}:{SR+4*p+3}], v{V_SLD}, {SRD_WS}, s{R_SL0} offen offset:{p*1280} sc1')
        a(f'buffer_load_dword v{SM+p}, v{V_SLDM}, {SRD_WS}, s{R_SL0} offen offset:{p*1280} sc1')
    a('s_waitcnt vmcnt(0)')
    f=V_VF
    maxchain(a,[f+1,f+3,f+5,f+7,f+9,f+11,SR,SR+4,SR+8,SR+12,SM,SM+1,SM+2,SM+3])
    poll_tail(a,LP)
    pt(a,3)
    um=[]
    for st in range(3):
        for k in range(3):
            d=V_U+4*k
            um.append(f'v_smfmac_f32_16x16x64_bf16 v[{d}:{d+3}], v[{V_VF+4*st}:{V_VF+4*st+3}], v[{wo(k,st)}:{wo(k,st)+7}], v{V_IDX}')
    E=V_E
    sm=[f'v_pk_add_f32 v[{SR}:{SR+1}], v[{SR}:{SR+1}], v[{SR+4}:{SR+5}]',
        f'v_pk_add_f32 v[{SR+2}:{SR+3}], v[{SR+2}:{SR+3}], v[{SR+6}:{SR+7}]',
        f'v_pk_add_f32 v[{SR+8}:{SR+9}], v[{SR+8}:{SR+9}], v[{SR+12}:{SR+13}]',
        f'v_pk_add_f32 v[{SR+10}:{SR+11}], v[{SR+10}:{SR+11}], v[{SR+14}:{SR+15}]',
        f'v_pk_add_f32 v[{SM}:{SM+1}], v[{SM}:{SM+1}], v[{SM+2}:{SM+3}]',
        f'v_pk_add_f32 v[{E}:{E+1}], v[{SR}:{SR+1}], v[{SR+8}:{SR+9}]',
        f'v_pk_add_f32 v[{E+2}:{E+3}], v[{SR+2}:{SR+3}], v[{SR+10}:{SR+11}]',
        f'v_add_f32 v{E+4}, v{SM}, v{SM+1}',
        f'v_max3_f32 v{V_MX}, v{E}, v{E+1}, v{E+2}',
        f'v_max3_f32 v{V_MX}, v{E+3}, v{E+4}, v{V_MX}', 's_nop 1',
        f'v_max_f32_dpp v{V_MX}, v{V_MX}, v{V_MX} row_ror:8 row_mask:0xf bank_mask:0xf',
        f'v_mov_b32 v{V_MX2}, v{V_MX}', 's_nop 1', f'v_permlane16_swap_b32 v{V_MX}, v{V_MX2}', 's_nop 0',
        f'v_max_f32 v{V_MX}, v{V_MX}, v{V_MX2}', f'v_mov_b32 v{V_MX2}, v{V_MX}', 's_nop 1',
        f'v_permlane32_swap_b32 v{V_MX}, v{V_MX2}', 's_nop 0', f'v_max_f32 v{V_MX}, v{V_MX}, v{V_MX2}',
        f'v_mul_f32 v{V_MX}, s{R_CSC}, v{V_MX}']
    for i in range(5): sm.append(f'v_fma_f32 v{E+i}, v{E+i}, s{R_CSC}, -v{V_MX}')
    for i in (4,0,1,2,3): sm.append(f'v_exp_f32 v{E+i}, v{E+i}')
    sm+= [f'v_mov_b32_dpp v{E+5}, v{E+4} row_ror:8 row_mask:0xf bank_mask:0xf',
          f'v_cvt_pk_bf16_f32 v{V_P}, v{E}, v{E+1}', f'v_cvt_pk_bf16_f32 v{V_P+1}, v{E+2}, v{E+3}',
          f'v_cvt_pk_bf16_f32 v{V_P+4}, v{E+4}, v{E+5}',
          f'v_mov_b32_dpp v{V_P+2}, v{V_P} row_ror:8 row_mask:0xf bank_mask:0xf',
          f'v_mov_b32_dpp v{V_P+3}, v{V_P+1} row_ror:8 row_mask:0xf bank_mask:0xf']
    k=0
    for i,x in enumerate(sm):
        if k<len(um) and i%2==0 and i<20: a(um[k]); k+=1
        a(x)
    assert k==len(um)
    def u_fold():
        fold(3,V_U)
        for k in range(3): a(f'v_cvt_pk_bf16_f32 v{V_UP+2*k}, v{V_U+4*k}, v{V_U+4*k+2}')
    def u_lds():
        a(f's_lshl_b32 s{R_T}, s{R_WAVE}, 8\nv_add_u32 v{V_T0}, s{R_T}, v{V_UO}')
        for k in range(3): a(f'ds_write_b32 v{V_T0}, v{V_UP+2*k} offset:{LDS_U+k*1024}')
    def w3_stores():
        for k in range(3): a(f'ds_read_b128 v[{V_RD+4*k}:{V_RD+4*k+3}], v{V_LIN} offset:{LDS_U+k*1024}')
        for t in range(3): a(f'ds_read_b64_tr_b16 v[{V_K+2*t}:{V_K+2*t+1}], v{V_TRK} offset:{t*512}')
        a('s_waitcnt lgkmcnt(0)')
        for k,CT in enumerate((R_CT0,R_CT1,R_CT2)):
            a(f"""
            s_lshl_b32 s{R_T}, s{CT}, 14
            s_add_u32 s{R_T}, s{R_T}, s{R_UM}
            buffer_store_dwordx4 v[{V_RD+4*k}:{V_RD+4*k+3}], v{V_UG}, {SRD_WS}, s{R_T} offen {KM_FLAGS}
            """)
        a(f's_mov_b64 exec, s[{R_KMLO}:{R_KMHI}]')
        for t in range(3):
            a(f's_add_u32 s{R_T}, s{R_KM}, {t*16384}\nbuffer_store_dwordx2 v[{V_K+2*t}:{V_K+2*t+1}], v{V_KMO}, {SRD_WS}, s{R_T} offen {KM_FLAGS}')
        a('s_mov_b64 exec, -1')
    pt(a,'Pready')
    a('s_nop 1')
    for k in range(3):
        d=V_O+4*k
        a(f'v_mfma_f32_16x16x32_bf16 v[{d}:{d+3}], v[{V_C+4*k}:{V_C+4*k+3}], v[{V_P}:{V_P+3}], 0')
    u_fold()
    a('s_nop 0')
    for k in range(3):
        d=V_O+4*k
        a(f'v_mfma_f32_16x16x16_bf16 v[{d}:{d+3}], v[{V_UP+2*k}:{V_UP+2*k+1}], v[{V_P+4}:{V_P+5}], v[{d}:{d+3}]')
    u_lds()
    a(f"""
    v_pk_add_f32 v[{E}:{E+1}], v[{E}:{E+1}], v[{E+2}:{E+3}]
    v_add_f32 v{V_SUM}, v{E}, v{E+1}
    v_add_f32 v{V_SUM}, v{V_SUM}, v{E+4}
    s_nop 1
    v_add_f32_dpp v{V_SUM}, v{V_SUM}, v{V_SUM} row_ror:8 row_mask:0xf bank_mask:0xf
    v_mov_b32 v{V_SUM2}, v{V_SUM}
    s_nop 1
    v_permlane16_swap_b32 v{V_SUM}, v{V_SUM2}
    s_nop 0
    v_add_f32 v{V_SUM}, v{V_SUM}, v{V_SUM2}
    v_mov_b32 v{V_SUM2}, v{V_SUM}
    s_nop 1
    v_permlane32_swap_b32 v{V_SUM}, v{V_SUM2}
    s_nop 0
    v_add_f32 v{V_SUM}, v{V_SUM}, v{V_SUM2}
    v_rcp_f32 v{V_SUM}, v{V_SUM}
    s_nop 0
    v_mov_b32 v{V_SUM2}, v{V_SUM}
    """)
    for k in range(3):
        d=V_O+4*k
        a(f'v_pk_mul_f32 v[{d}:{d+1}], v[{d}:{d+1}], v[{V_SUM}:{V_SUM2}]\nv_pk_mul_f32 v[{d+2}:{d+3}], v[{d+2}:{d+3}], v[{V_SUM}:{V_SUM2}]')
    pt(a,'PG')
    for k in range(3):
        a(f'ds_write_b128 v{V_LINW}, v[{V_O+4*k}:{V_O+4*k+3}] offset:{LDS_R2+k*4096}')
    a('s_waitcnt lgkmcnt(0)\ns_barrier')
    pt(a,4)
    LN=a.lab('BN'); LW3=a.lab('W3'); LC=a.lab('CE')
    a(f"""
    s_cmp_eq_u32 s{R_WAVE}, 3
    s_cbranch_scc1 {LW3}
    s_cmp_lt_u32 s{R_WAVE}, s{R_NT}
    s_cbranch_scc0 {LN}
    s_lshl_b32 s{R_T}, s{R_WAVE}, 12
    v_add_u32 v{V_T0}, s{R_T}, v{V_RED}
    ds_read_b128 v[{V_RD}:{V_RD+3}], v{V_T0} offset:{LDS_R2}
    ds_read_b128 v[{V_RD+4}:{V_RD+7}], v{V_T0} offset:{LDS_R2+1024}
    s_waitcnt lgkmcnt(0)
    v_pk_add_f32 v[{V_RD}:{V_RD+1}], v[{V_RD}:{V_RD+1}], v[{V_RD+4}:{V_RD+5}]
    v_pk_add_f32 v[{V_RD+2}:{V_RD+3}], v[{V_RD+2}:{V_RD+3}], v[{V_RD+6}:{V_RD+7}]
    s_nop 1
    """)
    for i in range(4): a(f'v_add_f32_dpp v{V_RD+i}, v{V_RD+i}, v{V_RD+i} row_ror:8 row_mask:0xf bank_mask:0xf')
    publish_G(a,V_RD,R_SG0)
    a(f'{LN}:')
    pt(a,5)
    LP=a.lab('PG')
    a(f"""
    s_add_u32 s{R_STEP}, s{R_STEP}, 1
    s_add_u32 s{R_T2}, s{R_SG0}, s{R_GLD}
    """)
    slot_regs(a)
    a(f"""
    s_cmp_lt_u32 s{R_WAVE}, s{R_NT}
    s_cbranch_scc0 {LC}
    """)
    if DELAY_G: a(f's_sleep {DELAY_G}')
    a(f'{LP}:')
    for q in range(4):
        a(f'buffer_load_dwordx4 v[{V_RD+4*q}:{V_RD+4*q+3}], v{V_GLD}, {SRD_WS}, s{R_T2} offen offset:{q*512} sc1')
    a('s_waitcnt vmcnt(0)')
    maxchain(a,[V_RD,V_RD+4,V_RD+8,V_RD+12])
    poll_tail(a,LP)
    pt(a,6)
    a(f"""
    v_pk_add_f32 v[{V_RD}:{V_RD+1}], v[{V_RD}:{V_RD+1}], v[{V_RD+4}:{V_RD+5}]
    v_pk_add_f32 v[{V_RD+2}:{V_RD+3}], v[{V_RD+2}:{V_RD+3}], v[{V_RD+6}:{V_RD+7}]
    v_pk_add_f32 v[{V_RD+8}:{V_RD+9}], v[{V_RD+8}:{V_RD+9}], v[{V_RD+12}:{V_RD+13}]
    v_pk_add_f32 v[{V_RD+10}:{V_RD+11}], v[{V_RD+10}:{V_RD+11}], v[{V_RD+14}:{V_RD+15}]
    v_pk_add_f32 v[{V_RD}:{V_RD+1}], v[{V_RD}:{V_RD+1}], v[{V_RD+8}:{V_RD+9}]
    v_pk_add_f32 v[{V_RD+2}:{V_RD+3}], v[{V_RD+2}:{V_RD+3}], v[{V_RD+10}:{V_RD+11}]
    s_nop 1
    """)
    for i in range(4): a(f'v_add_f32_dpp v{V_RD+i}, v{V_RD+i}, v{V_RD+i} row_ror:8 row_mask:0xf bank_mask:0xf')
    a(f'v_cvt_pk_bf16_f32 v{V_RD}, v{V_RD}, v{V_RD+1}\nv_cvt_pk_bf16_f32 v{V_RD+1}, v{V_RD+2}, v{V_RD+3}')
    publish_M(a,V_RD,R_SL0,LOC)
    a(f's_branch {LC}\n{LW3}:')
    pt(a,5)
    if not NOST: w3_stores()
    resets(a,R_SL2,R_SL2,R_SG2,R_SL3)
    a(f's_add_u32 s{R_STEP}, s{R_STEP}, 1')
    slot_regs(a)
    if PROF: a('s_memtime s[16:17]')
    a(f'{LC}:')
    pf_advance(a)
    if not NOADV: a(f"""
    s_add_u32 s{R_KM}, s{R_KM}, 256
    s_add_u32 s{R_UM}, s{R_UM}, 256
    """)
    if PROF:
        a(f's_cmp_eq_u32 s{R_WAVE}, 3\ns_cbranch_scc1 PTX\ns_cmp_lt_u32 s{R_WAVE}, s{R_NT}\ns_cbranch_scc1 PTX\ns_memtime s[16:17]\nPTX:')
    pt(a,7)
    pt_acc(a)
    a('s_branch REC_LOOP\nREC_LAST:')
    LP=a.lab('PV')
    a(f'{LP}:')
    for st in range(3):
        a(f'buffer_load_dwordx4 v[{V_VF+4*st}:{V_VF+4*st+3}], v{V_LIN}, {SRD_WS}, s{R_T2} offen offset:{st*1024} sc1')
    a('s_waitcnt vmcnt(0)')
    maxchain(a,[f+1,f+3,f+5,f+7,f+9,f+11])
    poll_tail(a,LP)
    for x in um: a(x)
    a('s_nop 7')
    u_fold()
    u_lds()
    LE=a.lab('RL')
    a(f's_waitcnt lgkmcnt(0)\ns_barrier\ns_cmp_eq_u32 s{R_WAVE}, 3\ns_cbranch_scc0 {LE}')
    w3_stores()
    a(f'{LE}:')
```

```python
import sys
from common import *
from gemm import *
import rec
import fin
import parta
NAME='concat_heads__linear_attn_block__memory_aug_recurrent_mem_tr__prompt'
HDR=open('cdna_kernels/'+NAME+'.s.ref').read().split('; Override launch')[0]

def load_args(a):
    a('''
    s_load_dwordx16 s[4:19], s[0:1], 0
    s_load_dwordx8 s[20:27], s[0:1], 64
    s_load_dwordx2 s[28:29], s[0:1], 96
    s_waitcnt lgkmcnt(0)
    ''')
def srd(a, reg, ptr, nbytes):
    a(f'''
    s_mov_b32 s{reg}, s{ptr}
    s_mov_b32 s{reg+1}, s{ptr+1}
    s_mov_b32 s{reg+2}, {nbytes}
    s_mov_b32 s{reg+3}, 0x20000
    ''')
P_AX=4;P_AWQKV=6;P_AWO=8;P_BX=10;P_MEM=12;P_WQ=14;P_WK=16;P_WV=18;P_WO=20;P_OUT=24;P_DBG=26;P_WS=28

def k_proj(a):
    TB=2
    a(f's_cmp_ge_u32 s2, 256\ns_cbranch_scc1 K1_END')
    load_args(a)
    gemm_lane_setup(a,TB)
    srd(a,32,P_BX,2048*640*2)
    srd(a,40,P_WS,WS_SIZE)
    srd(a,44,P_WO,32*192*640*2)
    a(f'''
    s_and_b32 s65, s2, 7
    s_lshl_b32 s65, s65, 2
    s_lshr_b32 s66, s2, 3
    s_and_b32 s66, s66, 3
    s_add_u32 s65, s65, s66          ; h
    s_lshr_b32 s66, s2, 5            ; rt
    s_mov_b32 s67, 0                 ; which
    s_mul_i32 s{S_WOL}, s{S_WAVE}, 3072
    K1_LOOP:
    s_lshl_b32 s{S_TOK0}, s66, 8
    s_mul_i32 s{S_COL}, s65, 384
    s_mov_b32 s{S_WSTRIDE}, 12288
    s_mov_b32 s36, s{P_WV}
    s_mov_b32 s37, s{P_WV+1}
    s_mov_b32 s{S_DST}, 0
    s_cmp_eq_u32 s67, 0
    s_cselect_b32 s36, s{P_WK}, s36
    s_cselect_b32 s37, s{P_WK+1}, s37
    s_cselect_b32 s{S_DST}, {WS_KX}, s{S_DST}
    s_cmp_eq_u32 s67, 1
    s_cselect_b32 s36, s{P_WQ}, s36
    s_cselect_b32 s37, s{P_WQ+1}, s37
    s_cselect_b32 s{S_DST}, {WS_QX}, s{S_DST}
    s_mov_b32 s38, {640*6144*2}
    s_mov_b32 s39, 0x20000
    s_mov_b32 s32, s{P_BX}
    s_mov_b32 s33, s{P_BX+1}
    s_cmp_eq_u32 s67, 3
    s_cbranch_scc0 K1_NOTA
    ; A1 item: rt = wg/10, cgrp = wg%10
    s_mul_i32 s66, s2, 6554
    s_lshr_b32 s66, s66, 16
    s_mul_i32 s68, s66, 10
    s_sub_u32 s65, s2, s68
    s_lshl_b32 s{S_TOK0}, s66, 8
    s_mul_i32 s{S_COL}, s65, 384
    s_mov_b32 s{S_WSTRIDE}, 3840
    s_mov_b32 s36, s{P_AWQKV}
    s_mov_b32 s37, s{P_AWQKV+1}
    s_mov_b32 s38, {640*1920*2}
    s_mov_b32 s32, s{P_AX}
    s_mov_b32 s33, s{P_AX+1}
    s_mov_b32 s{S_DST}, {WS_QA}
    K1_NOTA:
    ''')
    proj_item_setup(a,TB)
    a(f'''
    s_lshr_b32 s{S_T2}, s{S_TOK0}, 5
    s_mul_i32 s{S_T3}, s{S_WAVE}, {TB}
    s_add_u32 s{S_T2}, s{S_T2}, s{S_T3}
    s_mul_i32 s68, s65, {12*64}
    s_add_u32 s68, s68, s{S_T2}
    s_lshl_b32 s68, s68, 10
    s_add_u32 s{S_D0}, s68, s{S_DST}
    s_add_u32 s{S_D1}, s{S_D0}, 1024
    s_mul_i32 s68, s65, {40*64}
    s_add_u32 s68, s68, s{S_T2}
    s_lshl_b32 s68, s68, 10
    s_add_u32 s{S_C0}, s68, {WS_CX}
    s_add_u32 s{S_C1}, s{S_C0}, 1024
    s_mul_i32 s68, s65, 192
    s_mul_i32 s69, s{S_WAVE}, 48
    s_add_u32 s68, s68, s69
    s_mul_i32 s{S_WO}, s68, 1280
    ''')
    def tsw(idx,which,pre=''):
        L0=a.lab('X'); a(f's_cmp_eq_u32 s67, {which}\ns_cbranch_scc0 {L0}')
        if pre: a(pre)
        ts(a,idx); a(f'{L0}:')
    tsw(0,0); tsw(4,2)
    proj_main(a,TB,6)
    tsw(1,0); tsw(5,2)
    a(f'''
    s_cmp_eq_u32 s67, 2
    s_cbranch_scc1 K1_VC
    s_cmp_eq_u32 s67, 3
    s_cbranch_scc1 K1_A1
    ''')
    store_epilogue(a,TB,6,SRD_WS)
    tsw(2,0); tsw(3,1)
    a('s_branch K1_NEXT\nK1_VC:')
    a(f'''
    v_lshrrev_b32 v{V_T}, 2, v{V_LANE}
    v_mul_u32_u24 v{V_T}, 1280, v{V_T}
    v_and_b32 v{V_WG2}, 3, v{V_LANE}
    v_lshlrev_b32 v{V_WG2}, 4, v{V_WG2}
    v_add_u32 v{V_WG2}, v{V_WG2}, v{V_T}
    v_bfe_u32 v{V_STC}, v{V_LANE}, 4, 1
    v_lshlrev_b32 v{V_STC}, 16, v{V_STC}
    v_and_b32 v{V_T}, 15, v{V_LANE}
    v_lshl_add_u32 v{V_STC}, v{V_T}, 5, v{V_STC}
    v_lshrrev_b32 v{V_T}, 5, v{V_LANE}
    v_lshl_add_u32 v{V_STC}, v{V_T}, 4, v{V_STC}
    ''')
    vc_stage2(a,TB)
    tsw(6,2)
    tsw(7,2,'s_waitcnt vmcnt(0)')
    a('s_branch K1_NEXT\nK1_A1:')
    a(f's_mul_i32 s79, s65, 6')
    parta.phi_store_epilogue(a,TB,6,79)
    a(f'''
    K1_NEXT:
    s_barrier
    s_add_u32 s67, s67, 1
    s_cmp_lt_u32 s67, 3
    s_cbranch_scc1 K1_LOOP
    s_cmp_eq_u32 s67, 3
    s_cbranch_scc0 K1_END
    s_cmp_lt_u32 s2, 80
    s_cbranch_scc1 K1_LOOP
    K1_END:
    s_endpgm
    ''')

def k_rec(a):
    a('s_cmp_ge_u32 s2, 256\ns_cbranch_scc1 K2_END')
    load_args(a)
    srd(a,40,P_WS,WS_SIZE)
    srd(a,44,P_DBG,256)
    a(f'''
    s_getreg_b32 s70, hwreg(HW_REG_XCC_ID)
    s_and_b32 s70, s70, 7
    v_cmp_eq_u32 vcc, 0, v0
    s_and_saveexec_b64 s[72:73], vcc
    s_cbranch_execz K2_NOAT
    s_lshl_b32 s71, s70, 2
    v_mov_b32 v1, 1
    buffer_atomic_add v1, off, s[44:47], s71 sc0
    s_waitcnt vmcnt(0)
    v_mov_b32 v2, 0
    ds_write_b32 v2, v1
    s_waitcnt lgkmcnt(0)
    K2_NOAT:
    s_mov_b64 exec, s[72:73]
    s_barrier
    v_mov_b32 v2, 0
    ds_read_b32 v1, v2
    s_waitcnt lgkmcnt(0)
    v_readfirstlane_b32 s71, v1
    s_barrier
    s_cmp_ge_u32 s70, 4
    s_cbranch_scc1 K2_OTHER
    s_cmp_ge_u32 s71, 32
    s_cbranch_scc1 K2_END
    s_lshl_b32 s{rec.R_G}, s70, 1
    s_lshr_b32 s72, s71, 4
    s_add_u32 s{rec.R_G}, s{rec.R_G}, s72
    s_and_b32 s{rec.R_I}, s71, 15
    ''')
    rec.rec_setup(a)
    ts(a,16,vt=15)
    rec.rec_load_weights(a,P_WQ,P_WK,P_WV,P_WO)
    ts(a,17,vt=15)
    rec.rec_main(a,P_MEM)
    a('s_waitcnt vmcnt(0)')
    ts(a,18,vt=15)
    rec.dump_prof(a)
    a('s_branch K2_END\nK2_OTHER:')
    a('s_cmp_eq_u32 s70, 4\ns_cbranch_scc0 K2_A2\ns_cmp_eq_u32 s71, 0\ns_cbranch_scc0 K2_END')
    rec.measure_parity(a)
    a('K2_A2:')
    a('s_cmp_ge_u32 s70, 5\ns_cbranch_scc0 K2_END\ns_sub_u32 s49, s70, 5\ns_lshl_b32 s49, s49, 5\ns_add_u32 s49, s49, s71\ns_cmp_lt_u32 s49, 20\ns_cbranch_scc0 K2_END')
    parta.a2_item(a,P_AWO)
    a('K2_END:\ns_endpgm')
def k_fin(a):
    a('s_cmp_ge_u32 s2, 320\ns_cbranch_scc1 K3_END')
    load_args(a)
    srd(a,40,P_WS,WS_SIZE)
    srd(a,44,P_OUT,2048*1280*2)
    a('s_cmp_ge_u32 s2, 256\ns_cbranch_scc0 K3_FIN\ns_sub_u32 s49, s2, 256')
    parta.ascale_item(a,49)
    a('s_branch K3_END\nK3_FIN:')
    a('v_lshrrev_b32 v9, 6, v0\ns_nop 0\nv_readfirstlane_b32 s48, v9')
    ts(a,20,vt=9)
    fin.fin_setup(a)
    a(f's_and_b32 s{fin.F_S}, s2, 7\ns_lshr_b32 s{fin.F_NQ}, s2, 5\ns_lshl_b32 s{fin.F_NQ}, s{fin.F_NQ}, 3\ns_add_u32 s{fin.F_S}, s{fin.F_S}, s{fin.F_NQ}\ns_lshr_b32 s{fin.F_NQ}, s2, 3\ns_and_b32 s{fin.F_NQ}, s{fin.F_NQ}, 3')
    fin.fin_item(a)
    a('s_waitcnt vmcnt(0)')
    ts(a,21,vt=9)
    a('K3_END:\ns_endpgm')

def k_a3(a):
    TB=2
    a('s_cmp_ge_u32 s2, 32\ns_cbranch_scc1 K4_END')
    load_args(a)
    gemm_lane_setup(a,TB)
    srd(a,32,P_WS,WS_SIZE)
    srd(a,36,P_WS,WS_SIZE)
    srd(a,40,P_WS,WS_SIZE)
    srd(a,44,P_OUT,2048*1280*2)
    a(f"""
    s_lshr_b32 s66, s2, 2          ; rt
    s_and_b32 s65, s2, 3
    s_lshl_b32 s{S_TOK0}, s66, 8
    s_mul_i32 s{S_COL}, s65, 320
    s_add_u32 s{S_COL}, s{S_COL}, {WS_M}
    s_mov_b32 s{S_WSTRIDE}, 1280
    """)
    proj_item_setup(a,TB)
    a(f"""
    s_add_u32 s{S_XBASE}, s{S_XBASE}, {WS_PQ}
    s_mul_i32 s{S_T2}, s{S_WAVE}, {32*TB}
    s_add_u32 s{S_T2}, s{S_T2}, s{S_TOK0}
    s_mul_i32 s{S_D0}, s{S_T2}, 2560
    s_mul_i32 s{S_T3}, s65, 320
    s_add_u32 s{S_D0}, s{S_D0}, s{S_T3}
    s_add_u32 s{S_D1}, s{S_D0}, {32*2560}
    v_and_b32 v{V_T}, 31, v{V_LANE}
    v_mul_u32_u24 v{V_T2}, 2560, v{V_T}
    v_lshrrev_b32 v{V_T}, 5, v{V_LANE}
    v_lshl_add_u32 v{V_T2}, v{V_T}, 4, v{V_T2}
    """)
    proj_main(a,TB,5)
    parta.out_epilogue(a,TB,5,SRD_O,V_T2)
    a('K4_END:\ns_endpgm')

def emit(kernels, path):
    out=[HDR.rstrip('\n')]
    for (label,grid,block,lds,fn,vg,acc) in kernels:
        out.append(f'; @launch kernel={label} grid=({grid},1,1) block=({block},1,1) lds={lds}')
    out.append('.amdgcn_target "amdgcn-amd-amdhsa--gfx950"')
    out.append('.text')
    seen=set()
    for (label,grid,block,lds,fn,vg,acc) in kernels:
        if label in seen: continue
        seen.add(label)
        a=Asm(); fn(a)
        out.append(f'.globl {label}\n.p2align 8\n.type {label},@function\n{label}:')
        out.append(a.text())
    out.append('.section .rodata,"a"')
    seen=set()
    for (label,grid,block,lds,fn,vg,acc) in kernels:
        if label in seen: continue
        seen.add(label)
        out.append(f'''.p2align 6
.amdhsa_kernel {label}
  .amdhsa_next_free_vgpr {vg}
  .amdhsa_next_free_sgpr 102
  .amdhsa_accum_offset {acc}
  .amdhsa_group_segment_fixed_size 0
  .amdhsa_kernarg_size 104
  .amdhsa_user_sgpr_count 2
  .amdhsa_user_sgpr_kernarg_segment_ptr 1
  .amdhsa_system_sgpr_workgroup_id_x 1
  .amdhsa_float_denorm_mode_32 3
.end_amdhsa_kernel''')
    open(path,'w').write('\n'.join(out)+'\n')

import os
rec.PROF=bool(int(os.environ.get('PROF','0')))
rec.PSET=os.environ.get('PSET','0')
rec.PARX=int(os.environ.get('PAR','0'))
rec.PF_POS=os.environ.get('PF','G'); rec.RS_POS=os.environ.get('RS','G')
rec.NOADV=bool(int(os.environ.get('NOADV','0'))); rec.NOPF=bool(int(os.environ.get('NOPF','0'))); rec.NOST=bool(int(os.environ.get('NOST','0')))
rec.DELAY_M=int(os.environ.get('DM','0')); rec.DELAY_S=int(os.environ.get('DS','0')); rec.DELAY_G=int(os.environ.get('DG','0'))
import gemm as _g
_g.TS_ON=bool(int(os.environ.get('TS','1')))
if __name__=='__main__':
    kernels=[('k1_kernel',256,256,LDS_GEMM,k_proj,512,256),('k2_kernel',256,256,max(rec.LDS_REC,parta.LDS_KV),k_rec,512,256),('k3_kernel',320,256,fin.LDS_FIN,k_fin,512,256),('k4_kernel',32,256,LDS_GEMM,k_a3,512,256)]
    emit(kernels, sys.argv[1] if len(sys.argv)>1 else 'test.s')
```

```python
import sys
from common import *
from gemm import *
import rec
import fin
import parta
NAME='concat_heads__linear_attn_block__memory_aug_recurrent_mem_tr__prompt'
HDR=open('cdna_kernels/'+NAME+'.s.ref').read().split('; Override launch')[0]

def load_args(a):
    a('''
    s_load_dwordx16 s[4:19], s[0:1], 0
    s_load_dwordx8 s[20:27], s[0:1], 64
    s_load_dwordx2 s[28:29], s[0:1], 96
    s_waitcnt lgkmcnt(0)
    ''')
def srd(a, reg, ptr, nbytes):
    a(f'''
    s_mov_b32 s{reg}, s{ptr}
    s_mov_b32 s{reg+1}, s{ptr+1}
    s_mov_b32 s{reg+2}, {nbytes}
    s_mov_b32 s{reg+3}, 0x20000
    ''')
P_AX=4;P_AWQKV=6;P_AWO=8;P_BX=10;P_MEM=12;P_WQ=14;P_WK=16;P_WV=18;P_WO=20;P_OUT=24;P_DBG=26;P_WS=28

def k_proj(a):
    TB=2
    a(f's_cmp_ge_u32 s2, 256\ns_cbranch_scc1 K1_END')
    load_args(a)
    gemm_lane_setup(a,TB)
    srd(a,32,P_BX,2048*640*2)
    srd(a,40,P_WS,WS_SIZE)
    srd(a,44,P_WO,32*192*640*2)
    a(f'''
    s_and_b32 s65, s2, 7
    s_lshl_b32 s65, s65, 2
    s_lshr_b32 s66, s2, 3
    s_and_b32 s66, s66, 3
    s_add_u32 s65, s65, s66          ; h
    s_lshr_b32 s66, s2, 5            ; rt
    s_mov_b32 s67, 0                 ; which
    s_mul_i32 s{S_WOL}, s{S_WAVE}, 3072
    K1_LOOP:
    s_lshl_b32 s{S_TOK0}, s66, 8
    s_mul_i32 s{S_COL}, s65, 384
    s_mov_b32 s{S_WSTRIDE}, 12288
    s_mov_b32 s36, s{P_WV}
    s_mov_b32 s37, s{P_WV+1}
    s_mov_b32 s{S_DST}, 0
    s_cmp_eq_u32 s67, 0
    s_cselect_b32 s36, s{P_WK}, s36
    s_cselect_b32 s37, s{P_WK+1}, s37
    s_cselect_b32 s{S_DST}, {WS_KX}, s{S_DST}
    s_cmp_eq_u32 s67, 1
    s_cselect_b32 s36, s{P_WQ}, s36
    s_cselect_b32 s37, s{P_WQ+1}, s37
    s_cselect_b32 s{S_DST}, {WS_QX}, s{S_DST}
    s_mov_b32 s38, {640*6144*2}
    s_mov_b32 s39, 0x20000
    s_mov_b32 s32, s{P_BX}
    s_mov_b32 s33, s{P_BX+1}
    s_cmp_eq_u32 s67, 3
    s_cbranch_scc0 K1_NOTA
    ; A1 item: rt = wg/10, cgrp = wg%10
    s_mul_i32 s66, s2, 6554
    s_lshr_b32 s66, s66, 16
    s_mul_i32 s68, s66, 10
    s_sub_u32 s65, s2, s68
    s_lshl_b32 s{S_TOK0}, s66, 8
    s_mul_i32 s{S_COL}, s65, 384
    s_mov_b32 s{S_WSTRIDE}, 3840
    s_mov_b32 s36, s{P_AWQKV}
    s_mov_b32 s37, s{P_AWQKV+1}
    s_mov_b32 s38, {640*1920*2}
    s_mov_b32 s32, s{P_AX}
    s_mov_b32 s33, s{P_AX+1}
    s_mov_b32 s{S_DST}, {WS_QA}
    K1_NOTA:
    ''')
    proj_item_setup(a,TB)
    a(f'''
    s_lshr_b32 s{S_T2}, s{S_TOK0}, 5
    s_mul_i32 s{S_T3}, s{S_WAVE}, {TB}
    s_add_u32 s{S_T2}, s{S_T2}, s{S_T3}
    s_mul_i32 s68, s65, {12*64}
    s_add_u32 s68, s68, s{S_T2}
    s_lshl_b32 s68, s68, 10
    s_add_u32 s{S_D0}, s68, s{S_DST}
    s_add_u32 s{S_D1}, s{S_D0}, 1024
    s_mul_i32 s68, s65, {40*64}
    s_add_u32 s68, s68, s{S_T2}
    s_lshl_b32 s68, s68, 10
    s_add_u32 s{S_C0}, s68, {WS_CX}
    s_add_u32 s{S_C1}, s{S_C0}, 1024
    s_mul_i32 s68, s65, 192
    s_mul_i32 s69, s{S_WAVE}, 48
    s_add_u32 s68, s68, s69
    s_mul_i32 s{S_WO}, s68, 1280
    ''')
    def tsw(idx,which,pre=''):
        L0=a.lab('X'); a(f's_cmp_eq_u32 s67, {which}\ns_cbranch_scc0 {L0}')
        if pre: a(pre)
        ts(a,idx); a(f'{L0}:')
    tsw(0,0); tsw(4,2)
    proj_main(a,TB,6)
    tsw(1,0); tsw(5,2)
    a(f'''
    s_cmp_eq_u32 s67, 2
    s_cbranch_scc1 K1_VC
    s_cmp_eq_u32 s67, 3
    s_cbranch_scc1 K1_A1
    ''')
    store_epilogue(a,TB,6,SRD_WS)
    tsw(2,0); tsw(3,1)
    a('s_branch K1_NEXT\nK1_VC:')
    a(f'''
    v_lshrrev_b32 v{V_T}, 2, v{V_LANE}
    v_mul_u32_u24 v{V_T}, 1280, v{V_T}
    v_and_b32 v{V_WG2}, 3, v{V_LANE}
    v_lshlrev_b32 v{V_WG2}, 4, v{V_WG2}
    v_add_u32 v{V_WG2}, v{V_WG2}, v{V_T}
    v_bfe_u32 v{V_STC}, v{V_LANE}, 4, 1
    v_lshlrev_b32 v{V_STC}, 16, v{V_STC}
    v_and_b32 v{V_T}, 15, v{V_LANE}
    v_lshl_add_u32 v{V_STC}, v{V_T}, 5, v{V_STC}
    v_lshrrev_b32 v{V_T}, 5, v{V_LANE}
    v_lshl_add_u32 v{V_STC}, v{V_T}, 4, v{V_STC}
    ''')
    vc_stage2(a,TB)
    tsw(6,2)
    tsw(7,2,'s_waitcnt vmcnt(0)')
    a('s_branch K1_NEXT\nK1_A1:')
    a(f's_mul_i32 s79, s65, 6')
    parta.phi_store_epilogue(a,TB,6,79)
    a(f'''
    K1_NEXT:
    s_barrier
    s_add_u32 s67, s67, 1
    s_cmp_lt_u32 s67, 3
    s_cbranch_scc1 K1_LOOP
    s_cmp_eq_u32 s67, 3
    s_cbranch_scc0 K1_END
    s_cmp_lt_u32 s2, 80
    s_cbranch_scc1 K1_LOOP
    K1_END:
    s_endpgm
    ''')

def k_rec(a):
    a('s_cmp_ge_u32 s2, 256\ns_cbranch_scc1 K2_END')
    load_args(a)
    srd(a,40,P_WS,WS_SIZE)
    srd(a,44,P_DBG,256)
    a(f'''
    s_getreg_b32 s70, hwreg(HW_REG_XCC_ID)
    s_and_b32 s70, s70, 7
    v_cmp_eq_u32 vcc, 0, v0
    s_and_saveexec_b64 s[72:73], vcc
    s_cbranch_execz K2_NOAT
    s_lshl_b32 s71, s70, 2
    v_mov_b32 v1, 1
    buffer_atomic_add v1, off, s[44:47], s71 sc0
    s_waitcnt vmcnt(0)
    v_mov_b32 v2, 0
    ds_write_b32 v2, v1
    s_waitcnt lgkmcnt(0)
    K2_NOAT:
    s_mov_b64 exec, s[72:73]
    s_barrier
    v_mov_b32 v2, 0
    ds_read_b32 v1, v2
    s_waitcnt lgkmcnt(0)
    v_readfirstlane_b32 s71, v1
    s_barrier
    s_cmp_ge_u32 s70, 4
    s_cbranch_scc1 K2_OTHER
    s_cmp_ge_u32 s71, 32
    s_cbranch_scc1 K2_END
    s_lshl_b32 s{rec.R_G}, s70, 1
    s_lshr_b32 s72, s71, 4
    s_add_u32 s{rec.R_G}, s{rec.R_G}, s72
    s_and_b32 s{rec.R_I}, s71, 15
    ''')
    rec.rec_setup(a)
    ts(a,16,vt=15)
    rec.rec_load_weights(a,P_WQ,P_WK,P_WV,P_WO)
    ts(a,17,vt=15)
    rec.rec_main(a,P_MEM)
    a('s_waitcnt vmcnt(0)')
    ts(a,18,vt=15)
    rec.dump_prof(a)
    a('s_branch K2_END\nK2_OTHER:')
    a('s_cmp_eq_u32 s70, 4\ns_cbranch_scc0 K2_A2\ns_cmp_eq_u32 s71, 0\ns_cbranch_scc0 K2_END')
    rec.measure_parity(a)
    a('K2_A2:')
    a('s_cmp_ge_u32 s70, 5\ns_cbranch_scc0 K2_END\ns_sub_u32 s49, s70, 5\ns_lshl_b32 s49, s49, 5\ns_add_u32 s49, s49, s71\ns_cmp_lt_u32 s49, 20\ns_cbranch_scc0 K2_END')
    parta.a2_item(a,P_AWO)
    a('K2_END:\ns_endpgm')
def k_fin(a):
    a('s_cmp_ge_u32 s2, 320\ns_cbranch_scc1 K3_END')
    load_args(a)
    srd(a,40,P_WS,WS_SIZE)
    srd(a,44,P_OUT,2048*1280*2)
    a('s_cmp_ge_u32 s2, 256\ns_cbranch_scc0 K3_FIN\ns_sub_u32 s49, s2, 256')
    parta.ascale_item(a,49)
    a('s_branch K3_END\nK3_FIN:')
    a('v_lshrrev_b32 v9, 6, v0\ns_nop 0\nv_readfirstlane_b32 s48, v9')
    ts(a,20,vt=9)
    fin.fin_setup(a)
    a(f's_and_b32 s{fin.F_S}, s2, 7\ns_lshr_b32 s{fin.F_NQ}, s2, 5\ns_lshl_b32 s{fin.F_NQ}, s{fin.F_NQ}, 3\ns_add_u32 s{fin.F_S}, s{fin.F_S}, s{fin.F_NQ}\ns_lshr_b32 s{fin.F_NQ}, s2, 3\ns_and_b32 s{fin.F_NQ}, s{fin.F_NQ}, 3')
    fin.fin_item(a)
    a('s_waitcnt vmcnt(0)')
    ts(a,21,vt=9)
    a('K3_END:\ns_endpgm')

def k_a3(a):
    TB=2
    a('s_cmp_ge_u32 s2, 32\ns_cbranch_scc1 K4_END')
    load_args(a)
    gemm_lane_setup(a,TB)
    srd(a,32,P_WS,WS_SIZE)
    srd(a,36,P_WS,WS_SIZE)
    srd(a,40,P_WS,WS_SIZE)
    srd(a,44,P_OUT,2048*1280*2)
    a(f"""
    s_lshr_b32 s66, s2, 2          ; rt
    s_and_b32 s65, s2, 3
    s_lshl_b32 s{S_TOK0}, s66, 8
    s_mul_i32 s{S_COL}, s65, 320
    s_add_u32 s{S_COL}, s{S_COL}, {WS_M}
    s_mov_b32 s{S_WSTRIDE}, 1280
    """)
    proj_item_setup(a,TB)
    a(f"""
    s_add_u32 s{S_XBASE}, s{S_XBASE}, {WS_PQ}
    s_mul_i32 s{S_T2}, s{S_WAVE}, {32*TB}
    s_add_u32 s{S_T2}, s{S_T2}, s{S_TOK0}
    s_mul_i32 s{S_D0}, s{S_T2}, 2560
    s_mul_i32 s{S_T3}, s65, 320
    s_add_u32 s{S_D0}, s{S_D0}, s{S_T3}
    s_add_u32 s{S_D1}, s{S_D0}, {32*2560}
    v_and_b32 v{V_T}, 31, v{V_LANE}
    v_mul_u32_u24 v{V_T2}, 2560, v{V_T}
    v_lshrrev_b32 v{V_T}, 5, v{V_LANE}
    v_lshl_add_u32 v{V_T2}, v{V_T}, 4, v{V_T2}
    """)
    proj_main(a,TB,5)
    parta.out_epilogue(a,TB,5,SRD_O,V_T2)
    a('K4_END:\ns_endpgm')

def emit(kernels, path):
    out=[HDR.rstrip('\n')]
    for (label,grid,block,lds,fn,vg,acc) in kernels:
        out.append(f'; @launch kernel={label} grid=({grid},1,1) block=({block},1,1) lds={lds}')
    out.append('.amdgcn_target "amdgcn-amd-amdhsa--gfx950"')
    out.append('.text')
    seen=set()
    for (label,grid,block,lds,fn,vg,acc) in kernels:
        if label in seen: continue
        seen.add(label)
        a=Asm(); fn(a)
        out.append(f'.globl {label}\n.p2align 8\n.type {label},@function\n{label}:')
        out.append(a.text())
    out.append('.section .rodata,"a"')
    seen=set()
    for (label,grid,block,lds,fn,vg,acc) in kernels:
        if label in seen: continue
        seen.add(label)
        out.append(f'''.p2align 6
.amdhsa_kernel {label}
  .amdhsa_next_free_vgpr {vg}
  .amdhsa_next_free_sgpr 102
  .amdhsa_accum_offset {acc}
  .amdhsa_group_segment_fixed_size 0
  .amdhsa_kernarg_size 104
  .amdhsa_user_sgpr_count 2
  .amdhsa_user_sgpr_kernarg_segment_ptr 1
  .amdhsa_system_sgpr_workgroup_id_x 1
  .amdhsa_float_denorm_mode_32 3
.end_amdhsa_kernel''')
    open(path,'w').write('\n'.join(out)+'\n')

import os
rec.PROF=bool(int(os.environ.get('PROF','0')))
rec.PSET=os.environ.get('PSET','0')
rec.WAITPF=bool(int(os.environ.get('WAITPF','0')))
rec.EARLYB=bool(int(os.environ.get('EARLYB','1')))
rec.ONES=bool(int(os.environ.get('ONES','1')))
rec.W3DELAY=int(os.environ.get('W3D','0'))
rec.EB=int(os.environ.get('EB','10'))
rec.SLEEPN=int(os.environ.get('SLEEPN','12'))
rec.PARX=int(os.environ.get('PAR','0'))
rec.PF_POS=os.environ.get('PF','G'); rec.RS_POS=os.environ.get('RS','G')
rec.NOADV=bool(int(os.environ.get('NOADV','0'))); rec.NOPF=bool(int(os.environ.get('NOPF','0'))); rec.NOST=bool(int(os.environ.get('NOST','0')))
rec.DELAY_M=int(os.environ.get('DM','0')); rec.DELAY_S=int(os.environ.get('DS','0')); rec.DELAY_G=int(os.environ.get('DG','0'))
import gemm as _g
_g.TS_ON=bool(int(os.environ.get('TS','1')))
if __name__=='__main__':
    kernels=[('k1_kernel',256,256,LDS_GEMM,k_proj,512,256),('k2_kernel',256,256,max(rec.LDS_REC,parta.LDS_KV),k_rec,512,256),('k3_kernel',320,256,fin.LDS_FIN,k_fin,512,256),('k4_kernel',32,256,LDS_GEMM,k_a3,512,256)]
    emit(kernels, sys.argv[1] if len(sys.argv)>1 else 'test.s')
```

```python
from common import *
SRD_WS='s[40:43]'; SRD_OUT='s[44:47]'
F_WAVE=48; F_S=49; F_NQ=50; F_T=51; F_T2=52; F_QO=53; F_KO=54; F_KMO=55; F_CO=56; F_UO=57; F_H=58; F_CSC=59; F_OUT=60
F_MASK=64
V_LANE=1; V_QL=2; V_KL=3; V_KML=4; V_CL=5; V_UL=6; V_OL=7; V_LW=8; V_T0=9; V_T1=10; V_MX=11; V_MX2=12; V_SUM=13; V_NINF=14
V_SX=16
V_SM=32
V_P=48
V_C=64
V_U=104
V_ACC=128
V_TMP=208
def qa(set_,b): return set_*96+b*4
def ka(set_,b): return set_*96+48+b*4
def kma(b): return 192+b*4
LDS_FIN=81920

def fin_setup(a):
    a(f'''
    v_and_b32 v{V_LANE}, 63, v0
    v_lshrrev_b32 v{V_T0}, 6, v0
    s_nop 0
    v_readfirstlane_b32 s{F_WAVE}, v{V_T0}
    v_and_b32 v{V_T0}, 31, v{V_LANE}              ; t / j' / n
    v_lshrrev_b32 v{V_T1}, 5, v{V_LANE}           ; half
    v_lshlrev_b32 v{V_QL}, 5, v{V_T0}
    v_lshl_add_u32 v{V_QL}, v{V_T1}, 4, v{V_QL}
    v_and_b32 v{V_KL}, 0x13, v{V_T0}
    v_and_b32 v{V_MX}, 4, v{V_T0}
    v_lshl_add_u32 v{V_KL}, v{V_MX}, 1, v{V_KL}
    v_and_b32 v{V_MX}, 8, v{V_T0}
    v_lshrrev_b32 v{V_MX}, 1, v{V_MX}
    v_add_u32 v{V_KL}, v{V_KL}, v{V_MX}
    v_lshlrev_b32 v{V_KL}, 5, v{V_KL}
    v_lshl_add_u32 v{V_KL}, v{V_T1}, 4, v{V_KL}
    v_lshrrev_b32 v{V_KML}, 3, v{V_T0}
    v_mul_u32_u24 v{V_KML}, {12*16384}, v{V_KML}
    v_and_b32 v{V_MX}, 7, v{V_T0}
    v_lshl_add_u32 v{V_KML}, v{V_MX}, 5, v{V_KML}
    v_lshl_add_u32 v{V_KML}, v{V_T1}, 4, v{V_KML}
    v_lshrrev_b32 v{V_CL}, 4, v{V_T0}
    v_lshlrev_b32 v{V_UL}, 14, v{V_CL}
    v_lshlrev_b32 v{V_CL}, 16, v{V_CL}
    v_and_b32 v{V_MX}, 15, v{V_T0}
    v_lshl_add_u32 v{V_CL}, v{V_MX}, 5, v{V_CL}
    v_lshl_add_u32 v{V_CL}, v{V_T1}, 4, v{V_CL}
    v_lshl_add_u32 v{V_UL}, v{V_MX}, 4, v{V_UL}
    v_lshl_add_u32 v{V_UL}, v{V_T1}, 3, v{V_UL}
    v_mul_u32_u24 v{V_OL}, 2560, v{V_T0}
    v_lshl_add_u32 v{V_OL}, v{V_T1}, 4, v{V_OL}
    v_lshlrev_b32 v{V_LW}, 4, v{V_LANE}
    v_mov_b32 v{V_NINF}, 0xff800000
    v_mov_b32 v{V_P+10}, 0
    v_mov_b32 v{V_P+11}, 0
    s_mov_b32 s{F_CSC}, 0x3dd53b95
    ''')
    for k in range(5): a(f'v_mov_b32 v{V_U+4*k+2}, 0\nv_mov_b32 v{V_U+4*k+3}, 0')
    for r in range(16):
        q,i=divmod(r,4)
        def sig(x): return (x&0x13)|((x&4)<<1)|((x&8)>>1)
        t0=sig(8*q+i); t1=sig(8*q+4+i)
        a(f'''
        v_mov_b32 v{V_MX}, {t0}
        v_mov_b32 v{V_MX2}, {t1}
        v_cmp_eq_u32 vcc, 1, v{V_T1}
        s_nop 1
        v_cndmask_b32 v{V_MX}, v{V_MX}, v{V_MX2}, vcc
        v_cmp_le_u32 vcc, v{V_MX}, v{V_T0}
        s_mov_b64 s[{F_MASK+2*r}:{F_MASK+2*r+1}], vcc
        ''')

def qk_loads(set_, ldf):
    out=[]
    for b in range(12):
        out.append([f's_add_u32 s{F_T}, s{F_QO}, {b*65536}', f'buffer_load_dwordx4 a[{qa(set_,b)}:{qa(set_,b)+3}], v{V_QL}, {SRD_WS}, s{F_T} offen {ldf}'])
        out.append([f's_add_u32 s{F_T}, s{F_KO}, {b*65536}', f'buffer_load_dwordx4 a[{ka(set_,b)}:{ka(set_,b)+3}], v{V_KL}, {SRD_WS}, s{F_T} offen {ldf}'])
    return out
def km_loads(ldf):
    return [[f's_add_u32 s{F_T}, s{F_KMO}, {b*16384}', f'buffer_load_dwordx4 a[{kma(b)}:{kma(b)+3}], v{V_KML}, {SRD_WS}, s{F_T} offen {ldf}'] for b in range(12)]
def cu_loads(ldf):
    out=[]
    for nb in range(5):
        out.append([f's_add_u32 s{F_T}, s{F_CO}, {2*nb*65536}', f'buffer_load_dwordx4 v[{V_C+8*nb}:{V_C+8*nb+3}], v{V_CL}, {SRD_WS}, s{F_T} offen {ldf}'])
        out.append([f'buffer_load_dwordx4 v[{V_C+8*nb+4}:{V_C+8*nb+7}], v{V_CL}, {SRD_WS}, s{F_T} offen offset:512 {ldf}'])
        out.append([f's_add_u32 s{F_T}, s{F_UO}, {2*nb*16384}', f'buffer_load_dwordx2 v[{V_U+4*nb}:{V_U+4*nb+1}], v{V_UL}, {SRD_WS}, s{F_T} offen {ldf}'])
    return out

def fin_offsets(a):
    a(f'''
    s_lshl_b32 s{F_H}, s{F_WAVE}, 3
    s_mul_i32 s{F_T}, s{F_H}, {12*64}
    s_add_u32 s{F_T}, s{F_T}, s{F_S}
    s_lshl_b32 s{F_T2}, s{F_T}, 10
    s_add_u32 s{F_QO}, s{F_T2}, {WS_QX}
    s_add_u32 s{F_KO}, s{F_T2}, {WS_KX}
    s_lshl_b32 s{F_T2}, s{F_T}, 8
    s_add_u32 s{F_KMO}, s{F_T2}, {WS_KM}
    s_mul_i32 s{F_T}, s{F_H}, 40
    s_mul_i32 s{F_T2}, s{F_NQ}, 10
    s_add_u32 s{F_T}, s{F_T}, s{F_T2}
    s_lshl_b32 s{F_T}, s{F_T}, 6
    s_add_u32 s{F_T}, s{F_T}, s{F_S}
    s_lshl_b32 s{F_T2}, s{F_T}, 10
    s_add_u32 s{F_CO}, s{F_T2}, {WS_CX}
    s_lshl_b32 s{F_T2}, s{F_T}, 8
    s_add_u32 s{F_UO}, s{F_T2}, {WS_UM}
    ''')
def fin_warm(a, ldf):
    fin_offsets(a)
    L=a.lab('FW')
    a(f's_mov_b32 s{F_H}, 0\n{L}:')
    for g in qk_loads(0,ldf):
        for x in g: a(x)
    for nb in range(5):
        a(f's_add_u32 s{F_T}, s{F_CO}, {2*nb*65536}')
        a(f'buffer_load_dwordx4 v[{V_C+8*nb}:{V_C+8*nb+3}], v{V_CL}, {SRD_WS}, s{F_T} offen {ldf}')
        a(f'buffer_load_dwordx4 v[{V_C+8*nb+4}:{V_C+8*nb+7}], v{V_CL}, {SRD_WS}, s{F_T} offen offset:512 {ldf}')
    a(f'''
    s_add_u32 s{F_QO}, s{F_QO}, {12*65536}
    s_add_u32 s{F_KO}, s{F_KO}, {12*65536}
    s_add_u32 s{F_CO}, s{F_CO}, {40*65536}
    s_waitcnt vmcnt(20)
    s_add_u32 s{F_H}, s{F_H}, 1
    s_cmp_lt_u32 s{F_H}, 8
    s_cbranch_scc1 {L}
    s_waitcnt vmcnt(0)
    ''')
def fin_item(a, ldf='', lqk=''):
    fin_offsets(a)
    for g in qk_loads(0,ldf)+km_loads(ldf):
        for x in g: a(x)
    a(f's_add_u32 s{F_QO}, s{F_QO}, {12*65536}\ns_add_u32 s{F_KO}, s{F_KO}, {12*65536}')
    for hh in range(8):
        cur=hh&1
        a('s_waitcnt vmcnt(0)')
        cu=cu_loads(ldf)
        nxt=[]
        if hh<7: nxt=qk_loads(cur^1,ldf)
        mm=[]
        for b in range(12):
            c='0' if b==0 else f'v[{V_SX}:{V_SX+15}]'
            mm.append(f'v_mfma_f32_32x32x16_bf16 v[{V_SX}:{V_SX+15}], a[{ka(cur,b)}:{ka(cur,b)+3}], a[{qa(cur,b)}:{qa(cur,b)+3}], {c}')
            c='0' if b==0 else f'v[{V_SM}:{V_SM+15}]'
            mm.append(f'v_mfma_f32_32x32x16_bf16 v[{V_SM}:{V_SM+15}], a[{kma(b)}:{kma(b)+3}], a[{qa(cur,b)}:{qa(cur,b)+3}], {c}')
        for x in interleave(mm,cu+nxt): a(x)
        nafter=len(nxt)
        if hh==3:
            pass
        if hh<7: a(f's_add_u32 s{F_QO}, s{F_QO}, {12*65536}\ns_add_u32 s{F_KO}, s{F_KO}, {12*65536}')
        a('s_nop 7\ns_nop 3')
        if hh==3:
            a(f's_add_u32 s{F_KMO}, s{F_KMO}, {4*12*16384}')
            for g in km_loads(ldf):
                for x in g: a(x)
            nafter+=12
        M=V_SM+4*(hh&3)
        X=V_SX
        for r in range(16): a(f'v_cndmask_b32 v{X+r}, v{V_NINF}, v{X+r}, s[{F_MASK+2*r}:{F_MASK+2*r+1}]')
        a(f'''
        v_max3_f32 v{V_MX}, v{X}, v{X+1}, v{X+2}
        v_max3_f32 v{V_MX2}, v{X+3}, v{X+4}, v{X+5}
        v_max3_f32 v{V_MX}, v{X+6}, v{X+7}, v{V_MX}
        v_max3_f32 v{V_MX2}, v{X+8}, v{X+9}, v{V_MX2}
        v_max3_f32 v{V_MX}, v{X+10}, v{X+11}, v{V_MX}
        v_max3_f32 v{V_MX2}, v{X+12}, v{X+13}, v{V_MX2}
        v_max3_f32 v{V_MX}, v{X+14}, v{X+15}, v{V_MX}
        v_max3_f32 v{V_MX2}, v{M}, v{M+1}, v{V_MX2}
        v_max3_f32 v{V_MX}, v{M+2}, v{M+3}, v{V_MX}
        v_max_f32 v{V_MX}, v{V_MX}, v{V_MX2}
        v_mov_b32 v{V_MX2}, v{V_MX}
        s_nop 1
        v_permlane32_swap_b32 v{V_MX}, v{V_MX2}
        s_nop 0
        v_max_f32 v{V_MX}, v{V_MX}, v{V_MX2}
        v_mul_f32 v{V_MX}, s{F_CSC}, v{V_MX}
        ''')
        vals=[X+r for r in range(16)]+[M+i for i in range(4)]
        for v in vals: a(f'v_fma_f32 v{v}, v{v}, s{F_CSC}, -v{V_MX}')
        for v in vals: a(f'v_exp_f32 v{v}, v{v}')
        a('s_nop 0')
        a(f'v_add_f32 v{V_SUM}, v{vals[0]}, v{vals[1]}\nv_add_f32 v{V_MX2}, v{vals[2]}, v{vals[3]}')
        for k in range(4,20,2): a(f'v_add_f32 v{V_SUM}, v{V_SUM}, v{vals[k]}\nv_add_f32 v{V_MX2}, v{V_MX2}, v{vals[k+1]}')
        a(f'''
        v_add_f32 v{V_SUM}, v{V_SUM}, v{V_MX2}
        v_mov_b32 v{V_MX2}, v{V_SUM}
        s_nop 1
        v_permlane32_swap_b32 v{V_SUM}, v{V_MX2}
        s_nop 0
        v_add_f32 v{V_SUM}, v{V_SUM}, v{V_MX2}
        v_rcp_f32 v{V_SUM}, v{V_SUM}
        s_nop 0
        ''')
        for v in vals: a(f'v_mul_f32 v{v}, v{v}, v{V_SUM}')
        for k in range(8): a(f'v_cvt_pk_bf16_f32 v{V_P+k}, v{X+2*k}, v{X+2*k+1}')
        a(f'v_cvt_pk_bf16_f32 v{V_P+8}, v{M}, v{M+1}\nv_cvt_pk_bf16_f32 v{V_P+9}, v{M+2}, v{M+3}')
        a(f's_waitcnt vmcnt({nafter})')
        for nb in range(5):
            d=V_ACC+16*nb
            c='0' if hh==0 else f'v[{d}:{d+15}]'
            a(f'v_mfma_f32_32x32x16_bf16 v[{d}:{d+15}], v[{V_C+8*nb}:{V_C+8*nb+3}], v[{V_P}:{V_P+3}], {c}')
        for nb in range(5):
            d=V_ACC+16*nb
            a(f'v_mfma_f32_32x32x16_bf16 v[{d}:{d+15}], v[{V_C+8*nb+4}:{V_C+8*nb+7}], v[{V_P+4}:{V_P+7}], v[{d}:{d+15}]')
        for nb in range(5):
            d=V_ACC+16*nb
            a(f'v_mfma_f32_32x32x16_bf16 v[{d}:{d+15}], v[{V_U+4*nb}:{V_U+4*nb+3}], v[{V_P+8}:{V_P+11}], v[{d}:{d+15}]')
        a(f's_add_u32 s{F_CO}, s{F_CO}, {40*65536}\ns_add_u32 s{F_UO}, s{F_UO}, {40*16384}')
    a('s_nop 7\ns_nop 7')
    a(f's_mul_i32 s{F_T}, s{F_WAVE}, 20480\nv_add_u32 v{V_T0}, s{F_T}, v{V_LW}')
    for nb in range(5):
        for q in range(4):
            a(f'ds_write_b128 v{V_T0}, v[{V_ACC+16*nb+4*q}:{V_ACC+16*nb+4*q+3}] offset:{(nb*4+q)*1024}')
    a('s_waitcnt lgkmcnt(0)\ns_barrier')
    def reduce_block(nbreg_expr, off):
        pass
    a(f'''
    s_mul_i32 s{F_OUT}, s{F_S}, {32*2560}
    s_mul_i32 s{F_T}, s{F_NQ}, 320
    s_add_u32 s{F_OUT}, s{F_OUT}, s{F_T}
    s_add_u32 s{F_OUT}, s{F_OUT}, 1280
    s_lshl_b32 s{F_T}, s{F_WAVE}, 12
    v_add_u32 v{V_T0}, s{F_T}, v{V_LW}
    s_lshl_b32 s{F_T2}, s{F_WAVE}, 6
    s_add_u32 s{F_T2}, s{F_T2}, s{F_OUT}
    ''')
    def do_block():
        R=V_TMP
        for w in range(3):
            for q in range(4):
                a(f'ds_read_b128 v[{R+16*w+4*q}:{R+16*w+4*q+3}], v{V_T0} offset:{w*20480+q*1024}')
        for q in range(4):
            a(f'ds_read_b128 v[{V_SX+4*q}:{V_SX+4*q+3}], v{V_T0} offset:{3*20480+q*1024}')
        a('s_waitcnt lgkmcnt(0)')
        for k in range(0,16,2):
            a(f'v_pk_add_f32 v[{R+k}:{R+k+1}], v[{R+k}:{R+k+1}], v[{R+16+k}:{R+16+k+1}]')
            a(f'v_pk_add_f32 v[{V_SX+k}:{V_SX+k+1}], v[{V_SX+k}:{V_SX+k+1}], v[{R+32+k}:{R+32+k+1}]')
        for k in range(0,16,2): a(f'v_pk_add_f32 v[{R+k}:{R+k+1}], v[{R+k}:{R+k+1}], v[{V_SX+k}:{V_SX+k+1}]')
        d=V_P
        for k in range(8): a(f'v_cvt_pk_bf16_f32 v{d+k}, v{R+2*k}, v{R+2*k+1}')
        a('s_nop 1')
        a(f'v_permlane32_swap_b32 v{d}, v{d+2}\nv_permlane32_swap_b32 v{d+1}, v{d+3}\nv_permlane32_swap_b32 v{d+4}, v{d+6}\nv_permlane32_swap_b32 v{d+5}, v{d+7}')
        a(f'buffer_store_dwordx4 v[{d}:{d+3}], v{V_OL}, {SRD_OUT}, s{F_T2} offen')
        a(f'buffer_store_dwordx4 v[{d+4}:{d+7}], v{V_OL}, {SRD_OUT}, s{F_T2} offen offset:32')
    do_block()
    L=a.lab('FB')
    a(f'''
    s_cmp_eq_u32 s{F_WAVE}, 0
    s_cbranch_scc0 {L}
    v_add_u32 v{V_T0}, 16384, v{V_T0}
    s_add_u32 s{F_T2}, s{F_OUT}, 256
    s_nop 1
    ''')
    do_block()
    a(f'{L}:')
```

```python
from common import *
V_TID=0; V_LANE=1
V_XA=[2,3,4,5]
V_W0=6; V_W1=7
V_P0=8; V_P1=9
V_XG=[10,11]
V_WG=12
V_ST=13
V_T=14; V_T2=15
V_STC=12
V_PK=16
ACC=64
XB=[0,32768]; WB=[65536,65536+24576]
LDS_GEMM=65536+2*24576
S_WAVE=48
S_XBASE=49; S_XLDS=50; S_WST=51; S_WLDS=52; S_WSTRIDE=53; S_WSTEP=54; S_T=55; S_D0=56; S_D1=57
S_CNT=80; S_TOK0=58; S_COL=59; S_DST=60; S_NC16=61; S_MODE=62; S_T2=63; S_T3=64
SRD_X='s[32:35]'; SRD_W='s[36:39]'; SRD_WS='s[40:43]'; SRD_O='s[44:47]'

def gemm_lane_setup(a, TB):
    a(f'''
    v_and_b32 v{V_LANE}, 63, v{V_TID}
    v_lshrrev_b32 v{V_T}, 6, v{V_TID}
    s_nop 0
    v_readfirstlane_b32 s{S_WAVE}, v{V_T}
    ''')
    a(f'''
    v_and_b32 v{V_T}, 31, v{V_LANE}              ; t
    v_lshrrev_b32 v{V_T2}, 5, v{V_LANE}          ; half
    v_lshrrev_b32 v{V_PK}, 1, v{V_T}
    v_and_b32 v{V_PK}, 7, v{V_PK}                ; f=(t>>1)&7
    s_mul_i32 s{S_T}, s{S_WAVE}, {32*TB*128}
    v_lshlrev_b32 v{V_PK+1}, 7, v{V_T}           ; t*128
    v_add_u32 v{V_PK+1}, s{S_T}, v{V_PK+1}       ; row*128
    ''')
    for ks in range(4):
        a(f'''
        v_add_u32 v{V_PK+2}, {2*ks}, v{V_T2}
        v_xor_b32 v{V_PK+2}, v{V_PK+2}, v{V_PK}
        v_lshlrev_b32 v{V_PK+2}, 4, v{V_PK+2}
        v_add_u32 v{V_XA[ks]}, v{V_PK+1}, v{V_PK+2}
        ''')
    a(f'''
    v_lshlrev_b32 v{V_ST}, 5, v{V_T}
    v_lshlrev_b32 v{V_PK+2}, 4, v{V_T2}
    v_add_u32 v{V_ST}, v{V_ST}, v{V_PK+2}
    ''')
    a(f'''
    v_and_b32 v{V_PK}, 15, v{V_LANE}             ; i
    v_lshrrev_b32 v{V_PK+1}, 2, v{V_PK}          ; i>>2
    v_and_b32 v{V_PK+2}, 3, v{V_PK}              ; i&3
    v_lshrrev_b32 v{V_PK+3}, 4, v{V_LANE}        ; gidx
    v_and_b32 v{V_PK+4}, 1, v{V_PK+3}            ; sub
    v_lshlrev_b32 v{V_PK+4}, 5, v{V_PK+4}        ; sub*32
    v_lshlrev_b32 v{V_PK+2}, 3, v{V_PK+2}        ; (i&3)*8
    v_add_u32 v{V_PK+4}, v{V_PK+4}, v{V_PK+2}
    v_lshlrev_b32 v{V_PK+5}, 3, v{V_T2}          ; 8*half
    v_add_u32 v{V_PK+5}, v{V_PK+5}, v{V_PK+1}
    v_lshlrev_b32 v{V_PK+5}, 6, v{V_PK+5}
    v_add_u32 v{V_PK+5}, v{V_PK+5}, v{V_PK+4}
    v_add_u32 v{V_W0}, {WB[0]}, v{V_PK+5}
    v_add_u32 v{V_W1}, {WB[1]}, v{V_PK+5}
    v_lshlrev_b32 v{V_PK+5}, 2, v{V_T2}          ; 4*half
    v_add_u32 v{V_PK+5}, v{V_PK+5}, v{V_PK+1}
    v_lshlrev_b32 v{V_PK+5}, 6, v{V_PK+5}
    v_add_u32 v{V_PK+5}, v{V_PK+5}, v{V_PK+4}
    v_add_u32 v{V_P0}, {WB[0]}, v{V_PK+5}
    v_add_u32 v{V_P1}, {WB[1]}, v{V_PK+5}
    ''')
    for par in range(2):
        a(f'''
        v_lshrrev_b32 v{V_PK}, 4, v{V_LANE}
        v_add_u32 v{V_PK}, {4*par}, v{V_PK}
        v_and_b32 v{V_PK+1}, 7, v{V_LANE}
        v_xor_b32 v{V_PK}, v{V_PK}, v{V_PK+1}
        v_lshlrev_b32 v{V_PK}, 4, v{V_PK}
        v_lshrrev_b32 v{V_PK+1}, 3, v{V_LANE}
        v_mul_u32_u24 v{V_PK+1}, 1280, v{V_PK+1}
        v_add_u32 v{V_XG[par]}, v{V_PK}, v{V_PK+1}
        ''')
    a(f'''
    s_mul_i32 s{S_XLDS}, s{S_WAVE}, {4*TB*1024}
    s_lshl_b32 s{S_WLDS}, s{S_WAVE}, 10
    ''')

DMAF=''
def x_dma(TB, st):
    out=[]
    for n in range(4*TB):
        out.append([f's_add_u32 m0, s{S_XLDS}, {XB[st&1]+n*1024}',
                    f's_add_u32 s{S_T}, s{S_XBASE}, {n*8*1280}',
                    f'buffer_load_dwordx4 v{V_XG[n&1]}, {SRD_X}, s{S_T} offen {DMAF} lds'])
    out[-1].append(f's_add_u32 s{S_XBASE}, s{S_XBASE}, 128')
    return out
def w_dma(NFB, buf, sreg, step=True):
    out=[]
    for fb in range(NFB):
        out.append([f's_add_u32 m0, s{S_WLDS}, {WB[buf]+fb*4096}',
                    f's_add_u32 s{S_T}, s{sreg}, {fb*64}',
                    f'buffer_load_dwordx4 v{V_WG}, {SRD_W}, s{S_T} offen {DMAF} lds'])
    if step: out[-1].append(f's_add_u32 s{sreg}, s{sreg}, s{S_WSTEP}')
    return out

def frag_reads(TB,NFB,setidx,buf,ks):
    b=32*setidx
    ins=[]
    vw=V_W0 if buf==0 else V_W1
    for t in range(TB):
        ins.append(f'ds_read_b128 a[{b+24+4*t}:{b+24+4*t+3}], v{V_XA[ks]} offset:{XB[buf]+t*4096}')
    for fb in range(NFB):
        ins.append(f'ds_read_b64_tr_b16 a[{b+4*fb}:{b+4*fb+1}], v{vw} offset:{fb*4096+ks*1024}')
        ins.append(f'ds_read_b64_tr_b16 a[{b+4*fb+2}:{b+4*fb+3}], v{vw} offset:{fb*4096+ks*1024+256}')
    return ins
def acc_reg(TB,fb,t): return ACC+(fb*TB+t)*16
def mfmas(TB,NFB,setidx,first,orient='FT'):
    b=32*setidx; ins=[]
    for fb in range(NFB):
        for t in range(TB):
            r=acc_reg(TB,fb,t)
            c='0' if first else f'v[{r}:{r+15}]'
            W=f'a[{b+4*fb}:{b+4*fb+3}]'; X=f'a[{b+24+4*t}:{b+24+4*t+3}]'
            A,B=(W,X) if orient=='FT' else (X,W)
            ins.append(f'v_mfma_f32_32x32x16_bf16 v[{r}:{r+15}], {A}, {B}, {c}')
    return ins

def proj_item_setup(a, TB):
    a(f'''
    s_mul_i32 s{S_T}, s{S_WAVE}, {32*TB}
    s_add_u32 s{S_T}, s{S_T}, s{S_TOK0}
    s_mul_i32 s{S_XBASE}, s{S_T}, 1280
    s_lshl_b32 s{S_T}, s{S_WAVE}, 4
    s_mul_i32 s{S_WST}, s{S_T}, s{S_WSTRIDE}
    s_add_u32 s{S_WST}, s{S_WST}, s{S_COL}
    s_lshl_b32 s{S_WSTEP}, s{S_WSTRIDE}, 6
    v_lshrrev_b32 v{V_T}, 2, v{V_LANE}
    v_mul_lo_u32 v{V_T}, v{V_T}, s{S_WSTRIDE}
    v_and_b32 v{V_T2}, 3, v{V_LANE}
    v_lshlrev_b32 v{V_T2}, 4, v{V_T2}
    v_add_u32 v{V_WG}, v{V_T}, v{V_T2}
    ''')

def proj_main(a, TB, NFB, orient='FT'):
    for g in x_dma(TB,0)+w_dma(NFB,0,S_WST):
        for x in g: a(x)
    d1=w_dma(NFB,1,S_WST)+x_dma(TB,1)
    for g in d1:
        for x in g: a(x)
    a(f's_waitcnt vmcnt({len(d1)})')
    a('s_barrier')
    for x in frag_reads(TB,NFB,0,0,0): a(x)
    state={'pend':[]}
    def stage(buf, first=False, dma=True, last=False):
        for ks in range(4):
            cur=ks&1
            extras=[]
            a('s_waitcnt lgkmcnt(0)')
            if ks<3:
                extras+=frag_reads(TB,NFB,cur^1,buf,ks+1)
            elif not last:
                a('s_waitcnt vmcnt(0)')
                a('s_barrier')
                extras+=frag_reads(TB,NFB,cur^1,buf^1,0)
            dm=[]
            if ks==0 and state['pend']:
                dm=state['pend']; state['pend']=[]
            if ks==3 and dma:
                full=w_dma(NFB,buf,S_WST)+x_dma(TB,buf)
                h=(len(full)+1)//2
                dm=full[:h]; state['pend']=full[h:]
            mm=mfmas(TB,NFB,cur,first=(first and ks==0),orient=orient)
            body=[]; ei=0; di=0
            for i,m in enumerate(mm):
                body.append(m)
                for _ in range(2 if TB==2 else 3):
                    if ei<len(extras): body.append(extras[ei]); ei+=1
                if di<len(dm) and (len(extras)==0 or i>=1):
                    body.extend(dm[di]); di+=1
            while ei<len(extras): body.append(extras[ei]); ei+=1
            while di<len(dm): body.extend(dm[di]); di+=1
            for x in body: a(x)
    stage(0,first=True)
    stage(1)
    L=a.lab('PL')
    pend0=list(state['pend'])
    a(f's_mov_b32 s{S_CNT}, 0\n{L}:')
    stage(0); stage(1)
    assert state['pend']==pend0 or True
    a(f's_add_u32 s{S_CNT}, s{S_CNT}, 1\ns_cmp_lt_u32 s{S_CNT}, 3\ns_cbranch_scc1 {L}')
    stage(0,dma=False)
    stage(1,dma=False,last=True)

def pack_block(r, d):
    return [f'v_cvt_pk_bf16_f32 v{d+k}, v{r+2*k}, v{r+2*k+1}' for k in range(8)]
def swap_block(d):
    return [f'v_permlane32_swap_b32 v{d}, v{d+2}', f'v_permlane32_swap_b32 v{d+1}, v{d+3}',
            f'v_permlane32_swap_b32 v{d+4}, v{d+6}', f'v_permlane32_swap_b32 v{d+5}, v{d+7}']

def store_epilogue(a, TB, NFB, srd, flags=''):
    a('s_nop 7\ns_nop 7')
    k=0
    for fb in range(NFB):
        for t in range(TB):
            r=acc_reg(TB,fb,t); d=V_PK+8*(k&1); k+=1
            for x in pack_block(r,d): a(x)
            a('s_nop 1')
            for x in swap_block(d): a(x)
            sd=S_D0 if t==0 else S_D1
            a(f's_add_u32 s{S_T}, s{sd}, {(2*fb)*65536}')
            a(f'buffer_store_dwordx4 v[{d}:{d+3}], v{V_ST}, {srd}, s{S_T} offen {flags}')
            a(f's_add_u32 s{S_T}, s{sd}, {(2*fb+1)*65536}')
            a(f'buffer_store_dwordx4 v[{d+4}:{d+7}], v{V_ST}, {srd}, s{S_T} offen {flags}')

TS_ON=True
def ts(a, idx, wave_reg=S_WAVE, real=False, vt=14):
    import gemm as _m
    if not _m.TS_ON: return
    L=a.lab('TS')
    a(f'''
    s_cmp_eq_u32 s{wave_reg}, 0
    s_cbranch_scc0 {L}
    {'s_memrealtime' if real else 's_memtime'} s[70:71]
    s_waitcnt lgkmcnt(0)
    s_lshl_b32 s72, s2, 8
    s_add_u32 s72, s72, {WS_TS+idx*4}
    v_mov_b32 v{vt}, s70
    s_mov_b64 s[70:71], exec
    s_mov_b64 exec, 1
    buffer_store_dword v{vt}, off, {SRD_WS}, s72
    s_mov_b64 exec, s[70:71]
    {L}:
    ''')

S_WO=65+10
S_C0=76; S_C1=77
ACC2=[160,176,192,208,224,240,32,48]
def wo_dma(j):
    out=[]
    for nb in range(2):
        for q in range(3):
            out.append([f's_add_u32 m0, s{S_WOL}, {WB[j&1]+nb*12288+q*1024}',
                        f's_add_u32 s{S_T}, s{S_WO}, {q*16*1280+nb*64}',
                        f'buffer_load_dwordx4 v{V_WG2}, {SRD_O}, s{S_T} offen lds'])
    out[-1].append(f's_add_u32 s{S_WO}, s{S_WO}, 128')
    return out
S_WOL=78
V_WG2=15
def wo_reads(j,b):
    vp=V_P0 if (j&1)==0 else V_P1
    s=8*(b%8); ins=[]
    for nb in range(2):
        ins.append(f'ds_read_b64_tr_b16 a[{s+4*nb}:{s+4*nb+1}], v{vp} offset:{nb*12288+b*1024}')
        ins.append(f'ds_read_b64_tr_b16 a[{s+4*nb+2}:{s+4*nb+3}], v{vp} offset:{nb*12288+b*1024+512}')
    return ins
def vfrag(TB,tb,b):
    k=(b>>1)*TB+tb
    r=ACC+8*k+4*(b&1)
    return f'v[{r}:{r+3}]'
def acc2(TB,par,tb,nb): return ACC2[par*4+tb*2+nb] if TB==2 else ACC2[par*2+nb]
def c_epi_block(TB,par,tb,nb,d,flags,adv=False):
    r=acc2(TB,par,tb,nb)
    sd=S_C0 if tb==0 else S_C1
    g=[]
    g.append(pack_block(r,d)[:4]); g.append(pack_block(r,d)[4:]+['s_nop 1'])
    g.append(swap_block(d))
    g.append([f's_add_u32 s{S_T}, s{sd}, {(2*nb)*65536}', f'buffer_store_dwordx4 v[{d}:{d+3}], v{V_STC}, {SRD_WS}, s{S_T} offen {flags}'])
    last=[f'buffer_store_dwordx4 v[{d+4}:{d+7}], v{V_STC}, {SRD_WS}, s{S_T} offen offset:512 {flags}']
    if adv: last+= [f's_add_u32 s{S_C0}, s{S_C0}, {4*65536}', f's_add_u32 s{S_C1}, s{S_C1}, {4*65536}']
    g.append(last)
    return g
def vc_stage2(a, TB, flags=''):
    a('s_barrier')
    for g in wo_dma(0)+wo_dma(1):
        for x in g: a(x)
    a('s_nop 7\ns_nop 7')
    for k in range(6*TB):
        r=ACC+16*k; d=ACC+8*k
        for i in range(8): a(f'v_cvt_pk_bf16_f32 v{d+i}, v{r+2*i}, v{r+2*i+1}')
    a('s_waitcnt vmcnt(6)\ns_barrier')
    for x in wo_reads(0,0)+wo_reads(0,1): a(x)
    nst=2*2*TB
    def epi_list(par):
        epi=[]; k=0
        for tb in range(TB):
            for nb in range(2):
                epi+=c_epi_block(TB,par,tb,nb,PK2[k&1],flags,adv=(tb==TB-1 and nb==1)); k+=1
        return epi
    def body(par, with_epi, last):
        epi=epi_list(par^1) if with_epi else []
        ei=0
        for b in range(12):
            s=8*(b%8)
            extras=[]
            if b==10:
                a('s_waitcnt lgkmcnt(0)')
                if not last:
                    a(f's_waitcnt vmcnt({nst if with_epi else 0})')
                    a('s_barrier')
            elif b==11:
                a('s_waitcnt lgkmcnt(4)' if not last else 's_waitcnt lgkmcnt(0)')
            else:
                a('s_waitcnt lgkmcnt(4)')
            if b<10: extras+=[[x] for x in wo_reads(par,b+2)]
            elif not last: extras+=[[x] for x in wo_reads(par^1,b-10)]
            if b==10 and not last: extras+=wo_dma(par)[:3]
            if b==11 and not last: extras+=wo_dma(par)[3:]
            mm=[]
            for tb in range(TB):
                for nb in range(2):
                    r=acc2(TB,par,tb,nb)
                    c='0' if b==0 else f'v[{r}:{r+15}]'
                    mm.append(f'v_mfma_f32_32x32x16_bf16 v[{r}:{r+15}], {vfrag(TB,tb,b)}, a[{s+4*nb}:{s+4*nb+3}], {c}')
            eg=[]
            if epi and 1<=b<=9:
                upto=(len(epi)*b+8)//9
                while ei<upto: eg.append(epi[ei]); ei+=1
            for x in interleave(mm,extras+eg): a(x)
        assert ei==len(epi)
    body(0,False,False)
    L=a.lab('VL')
    a(f's_mov_b32 s{S_CNT}, 0\n{L}:')
    body(1,True,False); body(0,True,False)
    a(f's_add_u32 s{S_CNT}, s{S_CNT}, 1\ns_cmp_lt_u32 s{S_CNT}, 4\ns_cbranch_scc1 {L}')
    body(1,True,True)
    a('s_nop 7\ns_nop 7')
    for g in epi_list(1):
        for x in g: a(x)
PK2=[16,24]
```

```python
from common import *
SRD_WS='s[40:43]'; SRD_A='s[32:35]'
R_WAVE=48; R_G=49; R_I=50; R_H=51; R_JJ=52; R_STEP=53; R_NT=54
R_SL0=55; R_SL1=56; R_SL2=57; R_SL3=58
R_SG0=59; R_SG2=60
R_T=61; R_T2=62; R_T3=63; R_SPIN=64; R_CT=65
R_KX=66; R_CXO=67; R_UM=68; R_KM=69
R_MLO=76; R_MHI=77
R_KMLO=78; R_KMHI=79
R_SST=82; R_GST=84; R_MST=85; R_GLD=86
R_PAR=87; R_CSC=88; R_CT0=89; R_CT1=90; R_CT2=91; R_XLB=92
R_VO=30
R_G0=31; R_G1=74; R_G2=75
R_SI=80
R_PFL=81
V_UG=2
V_KXL=100
V_LANE=1; V_LIN=3; V_RED=4; V_SP=5; V_SLD=6; V_SLDM=7; V_MST=8; V_GLD=9; V_KXO=10; V_CO=11; V_UO=12; V_KMO=13; V_LINW=14
V_T0=15; V_T1=16; V_T2=17; V_T3=18; V_IDX=19; V_NEG1=20
V_A=24
V_U=24; V_SR=36; V_O=36; V_E=48
V_D=64; V_SM=64; V_MX=68; V_MX2=69
V_TW=76; V_TR=77; V_TWK=78; V_TRK=79; V_SUM=80; V_SUM2=81; V_SPM=82
V_RD=84; V_VF=84
V_KXN=100
V_Q=108; V_K=114; V_KX=120
V_P=128; V_SO=136
V_C=140; V_CN=152
V_UP=164
V_ONE=172
V_SS=176
V_GP=180
V_MP=170
V_SPG=101; V_MSG=102; V_HALF=103; V_CAN=104; V_CK=105
V_WO=184
def wqk(tile,st): return (tile*10+st)*8
def wo(ctk,st): return V_WO+(ctk*3+st)*8
LDS_M=0
LDS_T=10240
LDS_R2=13824
LDS_U=26112
LDS_PF=32768
LDS_STG=32768
LDS_REC=LDS_STG+4*20480
LOC=''
KM_FLAGS=''
SPIN_BUDGET=300000
SLEEPN=12
FUSED=False
TSHOOK=None
WHOOK=None
WS_PROG=WS_CTR
PROF=False
NPT=8
DELAY_M=0; DELAY_S=0; DELAY_G=0
EB=10; W3DELAY=0; ONES=True; EARLYB=True; WAITPF=False; PARX=0; PF_POS='G'; RS_POS='G'; NOADV=False; NOPF=False; NORS=False; NOST=False

PSETS={'0':['Msucc','bar1b','Spub','SVsucc','bar2','Gpub','Gsucc','end'],
       'A':['Msucc','bcast','smf','bar1b','Spub','SVsucc','Gsucc','end'],
       'B':['Msucc','Spub','SVsucc','Pready','PG','bar2','Gsucc','end']}
PSET='0'
PNAMES={0:'Msucc',1:'bar1b',2:'Spub',3:'SVsucc',4:'bar2',5:'Gpub',6:'Gsucc',7:'end'}
def pt(a,k):
    if not PROF: return
    name=PNAMES.get(k,k)
    L=PSETS[PSET]
    if name not in L: return
    i=L.index(name)
    a(f's_memtime s[{4+2*i}:{5+2*i}]')
def pt_acc(a):
    if not PROF: return
    a('s_waitcnt lgkmcnt(0)')
    a(f's_sub_u32 s72, s4, s71\ns_add_u32 s94, s94, s72')
    for k in range(1,NPT):
        a(f's_sub_u32 s72, s{4+2*k}, s{4+2*(k-1)}\ns_add_u32 s{94+k}, s{94+k}, s72')
    a(f's_mov_b32 s71, s{4+2*(NPT-1)}')
def dump_prof(a):
    if not PROF: return
    for k in range(8):
        a(f"""
        s_lshl_b32 s72, s2, 8
        s_mul_i32 s73, s{R_WAVE}, 32
        s_add_u32 s72, s72, s73
        s_add_u32 s72, s72, {WS_TS+128+k*4}
        v_mov_b32 v15, s{94+k}
        s_mov_b64 exec, 1
        buffer_store_dword v15, off, {SRD_WS}, s72
        s_mov_b64 exec, -1
        """)
def poll_tail(a, L):
    D=a.lab('PD')
    a(f'''
    s_cbranch_vccz {D}
    s_sub_u32 s{R_SPIN}, s{R_SPIN}, 1
    s_cbranch_scc0 {L}
    s_mov_b32 s{R_SPIN}, 0
    {D}:
    ''')
def poll_tail_sleep(a, L, n=None):
    n=n or SLEEPN
    D=a.lab('PD')
    a(f'''
    s_cbranch_vccz {D}
    s_sleep {n}
    s_sub_u32 s{R_SPIN}, s{R_SPIN}, 1
    s_cbranch_scc0 {L}
    s_mov_b32 s{R_SPIN}, 0
    {D}:
    ''')
def maxchain(a, regs):
    regs=list(regs)
    cur=[V_T0,V_T1]; first=[True,True]; k=0; i=0
    while i<len(regs):
        t=cur[k&1]
        if first[k&1]:
            if len(regs)-i>=3: a(f'v_max3_u32 v{t}, v{regs[i]}, v{regs[i+1]}, v{regs[i+2]}'); i+=3
            elif len(regs)-i==2: a(f'v_max_u32 v{t}, v{regs[i]}, v{regs[i+1]}'); i+=2
            else: a(f'v_mov_b32 v{t}, v{regs[i]}'); i+=1
            first[k&1]=False
        else:
            if len(regs)-i>=2: a(f'v_max3_u32 v{t}, v{regs[i]}, v{regs[i+1]}, v{t}'); i+=2
            else: a(f'v_max_u32 v{t}, v{regs[i]}, v{t}'); i+=1
        k+=1
    if not first[1]: a(f'v_max_u32 v{V_T0}, v{V_T0}, v{V_T1}')
    a(f'v_cmp_eq_u32 vcc, -1, v{V_T0}')

def measure_parity(a):
    L=a.lab('MP')
    a(f'''
    v_cmp_eq_u32 vcc, 0, v0
    s_and_saveexec_b64 s[72:73], vcc
    s_cbranch_execz {L}
    v_mov_b32 v1, 0
    s_mov_b32 s74, {WS_XG+XG_PROBE}
    s_add_u32 s75, s74, 8192
    buffer_store_dword v1, off, {SRD_WS}, s74 sc1
    buffer_store_dword v1, off, {SRD_WS}, s75 sc1
    s_waitcnt vmcnt(0)
    ''')
    for k,reg in ((0,74),(1,75)):
        a('s_memtime s[76:77]\ns_waitcnt lgkmcnt(0)')
        for _ in range(6): a(f'buffer_store_dword v1, off, {SRD_WS}, s{reg} sc1\ns_waitcnt vmcnt(0)')
        a(f's_memtime s[78:79]\ns_waitcnt lgkmcnt(0)\ns_sub_u32 s{80+k}, s78, s76')
    a(f'''
    s_cmp_gt_u32 s81, s80
    s_cselect_b32 s82, 2, 1
    v_mov_b32 v1, s82
    s_mov_b32 s74, 68
    buffer_store_dword v1, off, s[44:47], s74 sc1
    v_mov_b32 v2, s80
    s_mov_b32 s74, 72
    buffer_store_dword v2, off, s[44:47], s74 sc1
    v_mov_b32 v2, s81
    s_mov_b32 s74, 76
    buffer_store_dword v2, off, s[44:47], s74 sc1
    s_waitcnt vmcnt(0)
    {L}:
    s_mov_b64 exec, s[72:73]
    ''')
XG_PROBE=4*XG_SLOT

def g_offsets(a):
    a(f'''
    s_lshr_b32 s{R_T}, s{R_CT}, 1
    s_lshl_b32 s{R_T}, s{R_T}, 14
    s_and_b32 s{R_T2}, s{R_CT}, 1
    s_lshl_b32 s{R_T2}, s{R_T2}, 12
    s_add_u32 s{R_GLD}, s{R_T}, s{R_T2}
    s_lshl_b32 s{R_T2}, s{R_PAR}, 13
    s_add_u32 s{R_GLD}, s{R_GLD}, s{R_T2}
    s_lshl_b32 s{R_T2}, s{R_G}, 9
    s_add_u32 s{R_GST}, s{R_GLD}, s{R_T2}
    ''')
    for CT,RG in ((R_CT0,R_G0),(R_CT1,R_G1),(R_CT2,R_G2)):
        a(f'''
        s_lshr_b32 s{R_T}, s{CT}, 1
        s_lshl_b32 s{R_T}, s{R_T}, 14
        s_and_b32 s{R_T2}, s{CT}, 1
        s_lshl_b32 s{R_T2}, s{R_T2}, 12
        s_add_u32 s{RG}, s{R_T}, s{R_T2}
        s_lshl_b32 s{R_T2}, s{R_PAR}, 13
        s_add_u32 s{RG}, s{RG}, s{R_T2}
        s_lshl_b32 s{R_T2}, s{R_G}, 9
        s_add_u32 s{RG}, s{RG}, s{R_T2}
        ''')

def rec_setup(a):
    a(f'''
    v_and_b32 v{V_LANE}, 63, v0
    v_lshrrev_b32 v{V_T0}, 6, v0
    s_nop 0
    v_readfirstlane_b32 s{R_WAVE}, v{V_T0}
    s_lshr_b32 s{R_T}, s{R_I}, 2
    s_lshl_b32 s{R_H}, s{R_G}, 2
    s_add_u32 s{R_H}, s{R_H}, s{R_T}
    s_and_b32 s{R_JJ}, s{R_I}, 3
    s_mov_b32 s{R_CT0}, s{R_I}
    s_add_u32 s{R_CT1}, s{R_I}, 16
    s_add_u32 s{R_CT2}, s{R_I}, 32
    s_cmp_lt_u32 s{R_I}, 8
    s_cselect_b32 s{R_NT}, 3, 2
    s_cselect_b32 s{R_CT2}, s{R_CT2}, s{R_CT1}
    s_lshl_b32 s{R_CT}, s{R_WAVE}, 4
    s_add_u32 s{R_CT}, s{R_CT}, s{R_I}
    s_mov_b32 s{R_SPIN}, {SPIN_BUDGET}
    v_lshrrev_b32 v{V_T1}, 4, v{V_LANE}
    v_and_b32 v{V_T2}, 15, v{V_LANE}
    v_and_b32 v{V_T3}, 7, v{V_LANE}
    v_bfe_u32 v{V_T0}, v{V_LANE}, 3, 1
    v_lshlrev_b32 v{V_LIN}, 4, v{V_LANE}
    s_lshl_b32 s{R_T}, s{R_WAVE}, 10
    v_add_u32 v{V_LINW}, s{R_T}, v{V_LIN}
    v_and_b32 v{V_RED}, 0x37, v{V_LANE}
    v_lshlrev_b32 v{V_RED}, 4, v{V_RED}
    v_lshl_add_u32 v{V_RED}, v{V_T0}, 11, v{V_RED}
    v_lshl_add_u32 v{V_SP}, v{V_T1}, 3, v{V_T3}
    v_lshlrev_b32 v{V_SPM}, 3, v{V_SP}
    v_lshlrev_b32 v{V_SP}, 4, v{V_SP}
    s_mul_i32 s{R_T}, s{R_WAVE}, 5120
    s_add_u32 s{R_T}, s{R_T}, {XL_S}
    v_lshlrev_b32 v{V_SLD}, 9, v{V_T0}
    v_add_u32 v{V_SLD}, v{V_SLD}, v{V_SP}
    v_add_u32 v{V_SLD}, 256, v{V_SLD}
    v_add_u32 v{V_SLD}, s{R_T}, v{V_SLD}
    v_lshl_add_u32 v{V_SLDM}, v{V_T0}, 2, v{V_SPM}
    v_add_u32 v{V_SLDM}, s{R_T}, v{V_SLDM}
    ; V_MST = (2r + (g4>>1))*16 + (g4&1)*8
    v_lshrrev_b32 v{V_MST}, 1, v{V_T1}
    v_lshl_add_u32 v{V_MST}, v{V_T3}, 1, v{V_MST}
    v_lshlrev_b32 v{V_MST}, 4, v{V_MST}
    v_and_b32 v{V_GLD}, 1, v{V_T1}
    v_lshl_add_u32 v{V_MST}, v{V_GLD}, 3, v{V_MST}
    v_lshlrev_b32 v{V_GLD}, 11, v{V_T0}
    v_add_u32 v{V_GLD}, v{V_GLD}, v{V_SP}
    ; V_KXO
    v_lshrrev_b32 v{V_KXO}, 2, v{V_T2}
    v_lshlrev_b32 v{V_KXO}, 3, v{V_KXO}
    v_and_b32 v{V_CO}, 3, v{V_T2}
    v_add_u32 v{V_KXO}, v{V_KXO}, v{V_CO}
    s_lshl_b32 s{R_T}, s{R_WAVE}, 2
    s_sub_u32 s{R_T}, s{R_T}, 4
    s_max_i32 s{R_T}, s{R_T}, 0
    v_add_u32 v{V_KXO}, s{R_T}, v{V_KXO}
    v_lshlrev_b32 v{V_KXO}, 5, v{V_KXO}
    v_lshl_add_u32 v{V_KXO}, v{V_T1}, 3, v{V_KXO}
    ; V_CO
    v_lshrrev_b32 v{V_CO}, 1, v{V_T1}
    v_lshlrev_b32 v{V_CO}, 9, v{V_CO}
    v_lshl_add_u32 v{V_CO}, v{V_T2}, 5, v{V_CO}
    v_and_b32 v{V_UO}, 1, v{V_T1}
    v_lshl_add_u32 v{V_CO}, v{V_UO}, 4, v{V_CO}
    v_lshlrev_b32 v{V_UO}, 4, v{V_T2}
    v_lshl_add_u32 v{V_UO}, v{V_T1}, 2, v{V_UO}
    v_lshrrev_b32 v{V_KMO}, 2, v{V_T2}
    v_lshlrev_b32 v{V_KMO}, 1, v{V_KMO}
    v_and_b32 v{V_TW}, 1, v{V_T2}
    v_add_u32 v{V_KMO}, v{V_KMO}, v{V_TW}
    v_lshlrev_b32 v{V_KMO}, 5, v{V_KMO}
    v_lshl_add_u32 v{V_KMO}, v{V_T1}, 3, v{V_KMO}
    v_lshlrev_b32 v{V_TW}, 4, v{V_T2}
    v_lshl_add_u32 v{V_TW}, v{V_T1}, 2, v{V_TW}
    v_add_u32 v{V_TW}, {LDS_T}, v{V_TW}                 ; e*16 + g4*4
    v_lshlrev_b32 v{V_TWK}, 5, v{V_T2}
    v_lshl_add_u32 v{V_TWK}, v{V_T1}, 3, v{V_TWK}
    v_add_u32 v{V_TWK}, {LDS_T+1536}, v{V_TWK}          ; e*32 + g4*8
    v_lshrrev_b32 v{V_TR}, 2, v{V_T2}
    v_lshl_add_u32 v{V_TR}, v{V_T1}, 2, v{V_TR}         ; row e = 4g4 + (i>>2)
    v_and_b32 v{V_IDX}, 3, v{V_T2}
    v_lshlrev_b32 v{V_IDX}, 3, v{V_IDX}                  ; chunk*8
    v_lshl_add_u32 v{V_TRK}, v{V_TR}, 5, v{V_IDX}
    v_add_u32 v{V_TRK}, {LDS_T+1536}, v{V_TRK}
    v_lshl_add_u32 v{V_TR}, v{V_TR}, 4, v{V_IDX}
    v_add_u32 v{V_TR}, {LDS_T}, v{V_TR}
    ; V_IDX
    v_and_b32 v{V_IDX}, 1, v{V_LANE}
    v_cmp_eq_u32 vcc, 1, v{V_IDX}
    v_mov_b32 v{V_IDX}, 0x4444
    v_mov_b32 v{V_NEG1}, 0xeeee
    s_nop 0
    v_cndmask_b32 v{V_IDX}, v{V_IDX}, v{V_NEG1}, vcc
    ; masks
    v_cmp_gt_u32 vcc, 8, v{V_T2}
    s_mov_b64 s[{R_MLO}:{R_MHI}], vcc
    v_and_b32 v{V_T0}, 2, v{V_T2}
    v_cmp_eq_u32 vcc, 0, v{V_T0}
    s_mov_b64 s[{R_KMLO}:{R_KMHI}], vcc
    v_mov_b32 v{V_NEG1}, -1
    v_mov_b32 v{V_NEG1+1}, -1
    v_mov_b32 v{V_NEG1+2}, -1
    v_mov_b32 v{V_NEG1+3}, -1
    v_mov_b32 v{V_P+5}, 0
    v_mov_b32 v{V_UP+1}, 0
    v_mov_b32 v{V_UP+3}, 0
    v_mov_b32 v{V_UP+5}, 0
    v_mov_b32 v{V_GP}, -1
    v_mov_b32 v{V_GP+1}, -1
    v_mov_b32 v{V_GP+2}, -1
    v_mov_b32 v{V_GP+3}, -1
    v_mov_b32 v{V_MP}, -1
    v_mov_b32 v{V_MP+1}, -1
    v_bfe_u32 v{V_HALF}, v{V_LANE}, 3, 1
    v_bfe_u32 v{V_CAN}, v{V_LANE}, 2, 2            ; q = (lane>>2)&3
    s_cmp_eq_u32 s{R_WAVE}, 0
    s_cselect_b32 s{R_T}, 3, 2
    v_min_u32 v{V_CAN}, s{R_T}, v{V_CAN}
    v_mul_u32_u24 v{V_CAN}, 3072, v{V_CAN}
    v_and_b32 v{V_CK}, 3, v{V_LANE}
    v_lshl_add_u32 v{V_CAN}, v{V_CK}, 8, v{V_CAN}
    s_lshl_b32 s{R_T}, s{R_WAVE}, 10
    s_add_u32 s{R_T}, s{R_T}, 4
    v_add_u32 v{V_CAN}, s{R_T}, v{V_CAN}
    v_mov_b32 v{V_ONE}, 0x3f803f80
    v_mov_b32 v{V_ONE+1}, 0x3f803f80
    v_mov_b32 v{V_ONE+2}, 0x3f803f80
    v_mov_b32 v{V_ONE+3}, 0x3f803f80
    s_mul_i32 s{R_SST}, s{R_I}, 1280
    s_add_u32 s{R_SST}, s{R_SST}, {XL_S}
    s_cmp_eq_u32 s{R_WAVE}, 1
    s_cselect_b32 s{R_T}, 256, 0
    s_cmp_eq_u32 s{R_WAVE}, 2
    s_cselect_b32 s{R_T}, 768, s{R_T}
    s_add_u32 s{R_SST}, s{R_SST}, s{R_T}
    s_lshr_b32 s{R_T}, s{R_I}, 2
    s_mul_i32 s{R_VO}, s{R_T}, 3072
    s_mul_i32 s{R_T}, s{R_JJ}, 768
    s_add_u32 s{R_VO}, s{R_VO}, s{R_T}
    s_add_u32 s{R_VO}, s{R_VO}, {XL_V}
    s_lshl_b32 s{R_MST}, s{R_CT}, 8
    s_mov_b32 s{R_CSC}, 0x3dd53b95
    s_mul_i32 s{R_SI}, s{R_I}, 1280
    s_add_u32 s{R_SI}, s{R_SI}, {XL_S}
    v_lshrrev_b32 v{V_UG}, 4, v{V_LANE}
    v_mul_u32_u24 v{V_UG}, 655360, v{V_UG}
    v_and_b32 v{V_T0}, 15, v{V_LANE}
    v_lshl_add_u32 v{V_UG}, v{V_T0}, 4, v{V_UG}
    v_mov_b32 v{V_KXL}, v{V_KXO}
    ''')

def rec_load_weights(a, P_WQ,P_WK,P_WV,P_WO):
    VO=V_A
    TRQ=V_RD; TRO=V_RD+1; WOG=V_RD+3; TMP=40
    a(f'''
    v_and_b32 v{V_T0}, 15, v{V_LANE}
    v_lshrrev_b32 v{V_T1}, 4, v{V_LANE}
    v_lshrrev_b32 v{V_T2}, 2, v{V_T0}
    v_and_b32 v{V_T0}, 3, v{V_T0}
    v_lshlrev_b32 v{V_T0}, 3, v{V_T0}
    v_lshrrev_b32 v{V_T3}, 1, v{V_T1}
    v_lshlrev_b32 v{V_T3}, 4, v{V_T3}
    v_and_b32 v{TRQ}, 1, v{V_T1}
    v_lshl_add_u32 v{V_T3}, v{TRQ}, 2, v{V_T3}
    v_add_u32 v{V_T3}, v{V_T3}, v{V_T2}
    v_mul_u32_u24 v{TRQ}, 96, v{V_T3}
    v_add_u32 v{TRQ}, v{TRQ}, v{V_T0}
    v_lshl_add_u32 v{TRO}, v{V_T3}, 5, v{V_T0}
    s_mul_i32 s{R_T3}, s{R_WAVE}, 18432
    s_add_u32 s{R_T3}, s{R_T3}, 61440
    v_add_u32 v{TRO}, s{R_T3}, v{TRO}
    v_lshrrev_b32 v{V_T0}, 1, v{V_LANE}
    v_and_b32 v{V_T1}, 1, v{V_LANE}
    v_lshlrev_b32 v{V_T1}, 4, v{V_T1}
    v_mul_u32_u24 v{WOG}, 1280, v{V_T0}
    v_add_u32 v{WOG}, v{WOG}, v{V_T1}
    ''')
    for n in range(15):
        a(f'''
        v_add_u32 v{V_T0}, {64*n}, v{V_LANE}
        v_mul_u32_u24 v{V_T1}, 10923, v{V_T0}
        v_lshrrev_b32 v{V_T1}, 16, v{V_T1}
        v_mul_u32_u24 v{V_T2}, 6, v{V_T1}
        v_sub_u32 v{V_T2}, v{V_T0}, v{V_T2}
        v_mul_u32_u24 v{V_T1}, 12288, v{V_T1}
        v_lshl_add_u32 v{VO+n}, v{V_T2}, 4, v{V_T1}
        ''')
    a(f'''
    s_mul_i32 s{R_T}, s{R_H}, 384
    s_mul_i32 s{R_T2}, s{R_JJ}, 96
    s_add_u32 s{R_T}, s{R_T}, s{R_T2}
    s_mul_i32 s{R_T2}, s{R_WAVE}, {160*12288}
    s_add_u32 s74, s{R_T}, s{R_T2}
    s_mul_i32 s75, s{R_WAVE}, 15360
    ''')
    def slice_dma(P, ldsbase):
        a(f'''
        s_mov_b32 s32, s{P}
        s_mov_b32 s33, s{P+1}
        s_mov_b32 s34, {640*6144*2}
        s_mov_b32 s35, 0x20000
        ''')
        for n in range(15):
            a(f's_add_u32 m0, s75, {ldsbase+n*1024}\ns_nop 0\nbuffer_load_dwordx4 v{VO+n}, {SRD_A}, s74 offen lds')
    def unpack(addr, nst, stride_rows, base_off, dstfn):
        for st in range(nst):
            for hb in range(2):
                o=base_off+(st*64+hb*32)*stride_rows
                a(f'ds_read_b64_tr_b16 v[{TMP+8*(st&1)+4*hb}:{TMP+8*(st&1)+4*hb+1}], v{addr} offset:{o}')
                a(f'ds_read_b64_tr_b16 v[{TMP+8*(st&1)+4*hb+2}:{TMP+8*(st&1)+4*hb+3}], v{addr} offset:{o+8*stride_rows}')
            if st>0:
                a('s_waitcnt lgkmcnt(4)')
                for hb in range(2):
                    t=TMP+8*((st-1)&1)+4*hb
                    for k,src in enumerate((t,t+2,t+1,t+3)): a(dstfn(st-1,4*hb+k,src))
        a('s_waitcnt lgkmcnt(0)')
        st=nst-1
        for hb in range(2):
            t=TMP+8*(st&1)+4*hb
            for k,src in enumerate((t,t+2,t+1,t+3)): a(dstfn(st,4*hb+k,src))
    def wo_dma_all():
        a(f"""
        s_mov_b32 s32, s{P_WO}
        s_mov_b32 s33, s{P_WO+1}
        s_mov_b32 s34, {32*192*640*2}
        s_mov_b32 s35, 0x20000
        s_lshl_b32 s{R_T}, s{R_G}, 2
        s_add_u32 s{R_T}, s{R_T}, s{R_WAVE}
        s_mul_i32 s{R_T}, s{R_T}, {192*1280}
        """)
        for ctk,CT in enumerate((R_CT0,R_CT1,R_CT2)):
            a(f's_lshl_b32 s{R_T2}, s{CT}, 5\ns_add_u32 s{R_T2}, s{R_T2}, s{R_T}')
            for n in range(6):
                a(f"""
                s_add_u32 m0, s{R_T3}, {ctk*6144+n*1024}
                s_add_u32 s70, s{R_T2}, {n*32*1280}
                buffer_load_dwordx4 v{WOG}, {SRD_A}, s70 offen lds
                """)
    wo_dma_all(); slice_dma(P_WK,0)
    a('s_waitcnt vmcnt(0)\ns_barrier')
    if WHOOK: WHOOK(28)
    L3=a.lab('W3')
    a(f's_cmp_eq_u32 s{R_WAVE}, 3\ns_cbranch_scc1 {L3}')
    a(f's_lshl_b32 s{R_T2}, s{R_WAVE}, 5\nv_add_u32 v{V_RD+2}, s{R_T2}, v{TRQ}')
    unpack(V_RD+2,10,96,0,lambda st,k,src: f'v_accvgpr_write_b32 a{wqk(1,st)+k}, v{src}')
    a(f'{L3}:')
    for ctk in range(3):
        unpack(TRO,3,32,ctk*6144,lambda st,k,src,c=ctk: f'v_mov_b32 v{wo(c,st)+k}, v{src}')
    a('s_barrier')
    if WHOOK: WHOOK(29)
    slice_dma(P_WQ,0); slice_dma(P_WV,61440)
    a('s_waitcnt vmcnt(0)\ns_barrier')
    if WHOOK: WHOOK(30)
    L3=a.lab('W3'); LW=a.lab('WW')
    a(f"""
    s_cmp_eq_u32 s{R_WAVE}, 3
    s_cbranch_scc1 {L3}
    s_lshl_b32 s{R_T2}, s{R_WAVE}, 5
    v_add_u32 v{V_RD+2}, s{R_T2}, v{TRQ}
    """)
    unpack(V_RD+2,10,96,0,lambda st,k,src: f'v_accvgpr_write_b32 a{wqk(0,st)+k}, v{src}')
    a(f's_branch {LW}\n{L3}:')
    for t in range(3):
        a(f'v_add_u32 v{V_RD+2}, {61440+t*32}, v{TRQ}')
        unpack(V_RD+2,10,96,0,lambda st,k,src,t=t: f'v_accvgpr_write_b32 a{wqk(t,st)+k}, v{src}')
    a(f'{LW}:\ns_barrier')

def slot_regs(a):
    for k,reg in enumerate((R_SL0,R_SL1,R_SL2,R_SL3)):
        a(f'''
        s_add_u32 s{R_T}, s{R_STEP}, {k}
        s_and_b32 s{R_T}, s{R_T}, 3
        s_mul_i32 s{R_T}, s{R_T}, {XL_SLOT}
        s_add_u32 s{reg}, s{R_T}, s{R_XLB}
        ''')
    a(f'''
    s_and_b32 s{R_T}, s{R_STEP}, 3
    s_mul_i32 s{R_SG0}, s{R_T}, {XG_SLOT}
    s_add_u32 s{R_SG0}, s{R_SG0}, {WS_XG}
    s_xor_b32 s{R_T}, s{R_T}, 2
    s_mul_i32 s{R_SG2}, s{R_T}, {XG_SLOT}
    s_add_u32 s{R_SG2}, s{R_SG2}, {WS_XG}
    ''')

def step_voffs(a):
    a(f'''
    s_sub_u32 s{R_T}, s{R_SG2}, s{R_SG0}
    v_mad_i32_i24 v{V_SPG}, v{V_HALF}, s{R_T}, v{V_SP}
    v_add_u32 v{V_SPG}, s{R_SG0}, v{V_SPG}
    s_sub_u32 s{R_T}, s{R_SL3}, s{R_SL1}
    v_mad_i32_i24 v{V_MSG}, v{V_HALF}, s{R_T}, v{V_MST}
    v_add_u32 v{V_MSG}, s{R_SL1}, v{V_MSG}
    ''')
def publish_ST(a, data, slot, flags):
    a(f'''
    s_add_u32 s{R_T}, s{slot}, s{R_SST}
    s_mov_b64 exec, s[{R_MLO}:{R_MHI}]
    buffer_store_dwordx4 v[{data}:{data+3}], v{V_SP}, {SRD_WS}, s{R_T} offen {flags}
    s_mov_b64 exec, -1
    ''')
def publish_SM(a, data, slot, flags):
    a(f'''
    s_add_u32 s{R_T}, s{slot}, s{R_SST}
    s_mov_b64 exec, s[{R_MLO}:{R_MHI}]
    buffer_store_dwordx2 v[{data}:{data+1}], v{V_SPM}, {SRD_WS}, s{R_T} offen {flags}
    s_mov_b64 exec, -1
    ''')
def publish_V(a, datas, slot, flags):
    a(f'''
    s_add_u32 s{R_T}, s{R_VO}, s{slot}
    s_mov_b64 exec, s[{R_MLO}:{R_MHI}]
    ''')
    for t in range(3):
        a(f'buffer_store_dwordx2 v[{datas[t]}:{datas[t]+1}], v{V_MST}, {SRD_WS}, s{R_T} offen offset:{t*256} {flags}')
    a('s_mov_b64 exec, -1')
def publish_G(a, data, sg):
    a(f'''
    s_add_u32 s{R_T}, s{sg}, s{R_GST}
    s_mov_b64 exec, s[{R_MLO}:{R_MHI}]
    buffer_store_dwordx4 v[{data}:{data+3}], v{V_SP}, {SRD_WS}, s{R_T} offen sc1
    s_mov_b64 exec, -1
    ''')
def publish_M(a, data, slot, flags):
    a(f'''
    s_add_u32 s{R_T}, s{slot}, s{R_MST}
    s_mov_b64 exec, s[{R_MLO}:{R_MHI}]
    buffer_store_dwordx2 v[{data}:{data+1}], v{V_MST}, {SRD_WS}, s{R_T} offen {flags}
    s_mov_b64 exec, -1
    ''')
def resets(a, sS, sV, sG, sM):
    N=V_NEG1
    a(f"""
    s_mov_b64 exec, s[{R_MLO}:{R_MHI}]
    s_add_u32 s{R_T}, s{sS}, s{R_SI}
    buffer_store_dwordx2 v[{N}:{N+1}], v{V_SPM}, {SRD_WS}, s{R_T} offen {LOC}
    buffer_store_dwordx4 v[{N}:{N+3}], v{V_SP}, {SRD_WS}, s{R_T} offen offset:256 {LOC}
    buffer_store_dwordx4 v[{N}:{N+3}], v{V_SP}, {SRD_WS}, s{R_T} offen offset:768 {LOC}
    s_add_u32 s{R_T}, s{R_VO}, s{sV}
    """)
    for t in range(3):
        a(f'buffer_store_dwordx2 v[{N}:{N+1}], v{V_MST}, {SRD_WS}, s{R_T} offen offset:{t*256} {LOC}')
    for CT,RG in ((R_CT0,R_G0),(R_CT1,R_G1),(R_CT2,R_G2)):
        a(f"""
        s_add_u32 s{R_T}, s{sG}, s{RG}
        buffer_store_dwordx4 v[{N}:{N+3}], v{V_SP}, {SRD_WS}, s{R_T} offen sc1
        s_lshl_b32 s{R_T}, s{CT}, 8
        s_add_u32 s{R_T}, s{R_T}, s{sM}
        buffer_store_dwordx2 v[{N}:{N+1}], v{V_MST}, {SRD_WS}, s{R_T} offen {LOC}
        """)
    a('s_mov_b64 exec, -1')
def pf_groups(ldf, ldsbase, blocks):
    out=[]
    for b in blocks:
        if b<12:
            w,k=divmod(b,3); CT=(R_CT0,R_CT1,R_CT2)[k]
            out.append([f's_lshl_b32 s{R_T}, s{CT}, 16', f's_add_u32 s{R_T}, s{R_T}, s{R_CXO}', f's_add_u32 s{R_T}, s{R_T}, {w*40*65536}',
                        f's_add_u32 m0, s{ldsbase}, {b*1024}', 's_nop 0',
                        f'buffer_load_dwordx4 v{V_CO}, {SRD_WS}, s{R_T} offen {ldf} lds'])
        else:
            t=b-12
            out.append([f's_add_u32 m0, s{ldsbase}, {b*1024}', f's_add_u32 s{R_T}, s{R_KX}, {t*65536}',
                        f'buffer_load_dwordx4 v{V_LIN}, {SRD_WS}, s{R_T} offen {ldf} lds'])
    return out
def pf_advance(a):
    if not NOADV: a(f"""
    s_add_u32 s{R_KX}, s{R_KX}, 1024
    s_add_u32 s{R_CXO}, s{R_CXO}, 1024
    """)
R_PFN=83
R_PFM=3; R_PFKM=70
R_UW=20; R_KW=21; R_UMB=24; R_KMB=25
PFB=[[0,1,2,3,4],[5,6,7,8,9],[10,11,12,13,14]]
LDS_FLAG=31744
R_PFC=23
R_PFK=22

def progress(a, val):
    a(f"""
    s_lshl_b32 s{R_T}, s{R_G}, 4
    s_add_u32 s{R_T}, s{R_T}, s{R_I}
    s_lshl_b32 s{R_T}, s{R_T}, 8
    s_add_u32 s{R_T}, s{R_T}, {WS_PROG}
    v_mov_b32 v{V_T0}, {val}
    s_mov_b64 exec, 1
    buffer_store_dword v{V_T0}, off, {SRD_WS}, s{R_T} sc1
    s_mov_b64 exec, -1
    """)
def kvc_wait(a, big=False, off=None, thr='64'):
    L=a.lab('KW'); D=a.lab('KD')
    if off is None: a(f's_lshl_b32 s{R_T2}, s{R_T2}, 2\ns_add_u32 s{R_T2}, s{R_T2}, 96')
    else: a(f's_mov_b32 s{R_T2}, {off}')
    a(f"""
    s_mov_b32 s{R_T}, 2000000
    {L}:
    buffer_load_dword v{V_T0}, off, s[44:47], s{R_T2} sc1
    s_waitcnt vmcnt(0)
    v_cmp_gt_u32 vcc, {thr}, v{V_T0}
    s_cbranch_vccz {D}
    s_sleep 8
    s_sub_u32 s{R_T}, s{R_T}, 1
    s_cbranch_scc0 {L}
    {D}:
    """)
def rec_main(a, P_MEM, ldf='', SFX='', slow=False):
    a(f"""
    s_mul_i32 s{R_XLB}, s{R_G}, {XL_GRP}
    s_add_u32 s{R_XLB}, s{R_XLB}, {WS_XL}
    """)
    if slow:
        a(f's_mov_b32 s{R_PAR}, 0')
    else:
        LW=a.lab('PW')
        a(f"""
        s_mov_b32 s{R_T}, 68
        {LW}:
        buffer_load_dword v{V_T0}, off, s[44:47], s{R_T} sc1
        s_waitcnt vmcnt(0)
        v_cmp_eq_u32 vcc, 0, v{V_T0}
        """)
        poll_tail_sleep(a,LW)
        a(f"""
        v_readfirstlane_b32 s{R_PAR}, v{V_T0}
        s_nop 3
        s_max_u32 s{R_PAR}, s{R_PAR}, 1
        s_sub_u32 s{R_PAR}, s{R_PAR}, 1
        s_xor_b32 s{R_PAR}, s{R_PAR}, {PARX}
        """)
    g_offsets(a)
    LNI=a.lab('NI')
    a(f's_cmp_eq_u32 s{R_WAVE}, 3\ns_cbranch_scc0 {LNI}')
    for k in range(4):
        a(f"""
        s_mov_b32 s93, s{R_XLB}
        s_add_u32 s93, s93, {k*XL_SLOT}
        s_mov_b32 s94, {WS_XG+k*XG_SLOT}
        """)
        resets(a,93,93,94,93)
    if FUSED: progress(a,'0')
    a(f'{LNI}:')
    a('s_waitcnt vmcnt(0)\ns_barrier')
    LW=a.lab('SB'); LX=a.lab('SBX')
    a(f"""
    s_cmp_eq_u32 s{R_WAVE}, 0
    s_cbranch_scc0 {LX}
    s_mov_b64 exec, 1
    v_mov_b32 v{V_T0}, 1
    s_mov_b32 s{R_T}, {64}
    buffer_atomic_add v{V_T0}, off, s[44:47], s{R_T}
    {LW}:
    buffer_load_dword v{V_T0}, off, s[44:47], s{R_T} sc1
    s_waitcnt vmcnt(0)
    v_cmp_gt_u32 vcc, 128, v{V_T0}
    """)
    poll_tail_sleep(a,LW)
    a(f"""
    s_mov_b64 exec, -1
    {LX}:
    s_barrier
    """)
    a(f"""
    s_mul_i32 s{R_T}, s{R_H}, 12
    s_mul_i32 s{R_T2}, s{R_JJ}, 3
    s_add_u32 s{R_T}, s{R_T}, s{R_T2}
    s_lshl_b32 s{R_KX}, s{R_T}, 16
    s_add_u32 s{R_KX}, s{R_KX}, {WS_KX}
    s_lshl_b32 s{R_KM}, s{R_T}, 14
    s_add_u32 s{R_KM}, s{R_KM}, {WS_KM}
    s_lshl_b32 s{R_T}, s{R_G}, 2
    s_mul_i32 s{R_CXO}, s{R_T}, {40*65536}
    s_add_u32 s{R_CXO}, s{R_CXO}, {WS_CX}
    s_mul_i32 s{R_UM}, s{R_T}, {40*16384}
    s_add_u32 s{R_UM}, s{R_UM}, {WS_UM}
    s_mov_b32 s{R_STEP}, 0
    """)
    LNI=a.lab('NI')
    a(f's_cmp_eq_u32 s{R_WAVE}, 3\ns_cbranch_scc0 {LNI}')
    if FUSED:
        kvc_wait(a, off=172, thr='64')
    a(f's_mov_b32 s93, {LDS_PF}')
    for g in pf_groups(ldf,93,range(15)):
        for x in g: a(x)
    a(f'{LNI}:')
    pf_advance(a)
    MB=V_RD
    a(f"""
    s_mov_b32 s32, s{P_MEM}
    s_mov_b32 s33, s{P_MEM+1}
    s_mov_b32 s34, 10240
    s_mov_b32 s35, 0x20000
    v_bfe_u32 v{V_T0}, v{V_LANE}, 1, 3
    v_mul_u32_u24 v{V_T0}, 1280, v{V_T0}
    v_lshrrev_b32 v{V_T1}, 4, v{V_LANE}
    v_lshl_add_u32 v{V_T0}, v{V_T1}, 5, v{V_T0}
    v_and_b32 v{V_T1}, 1, v{V_LANE}
    v_lshl_add_u32 v{V_T0}, v{V_T1}, 4, v{V_T0}
    s_lshl_b32 s{R_T}, s{R_WAVE}, 7
    """)
    for q in range(3):
        a(f'buffer_load_dwordx4 v[{MB+4*q}:{MB+4*q+3}], v{V_T0}, {SRD_A}, s{R_T} offen offset:{q*512}')
    a(f'v_mov_b32 v{V_T2}, 0\nv_mov_b32 v{V_T3}, {LDS_FLAG}\nds_write_b32 v{V_T3}, v{V_T2}')
    a('s_waitcnt vmcnt(0) lgkmcnt(0)\ns_barrier')
    slot_regs(a)
    if TSHOOK: TSHOOK()
    if PROF:
        for k in range(8): a(f's_mov_b32 s{94+k}, 0')
        a('s_memtime s[72:73]\ns_waitcnt lgkmcnt(0)\ns_mov_b32 s71, s72')
    def prework():
        for i in range(12): a(f'v_mov_b32 v{V_D+i}, 0')
        a(f"""
        s_and_b32 s{R_PFL}, s{R_STEP}, 1
        s_mul_i32 s{R_PFL}, s{R_PFL}, 15360
        s_add_u32 s{R_PFL}, s{R_PFL}, {LDS_PF}
        s_xor_b32 s{R_PFN}, s{R_STEP}, 1
        s_and_b32 s{R_PFN}, s{R_PFN}, 1
        s_mul_i32 s{R_PFN}, s{R_PFN}, 15360
        s_add_u32 s{R_PFN}, s{R_PFN}, {LDS_PF}
        s_mul_i32 s{R_T}, s{R_WAVE}, 3072
        s_add_u32 s{R_T}, s{R_T}, s{R_PFL}
        v_add_u32 v{V_T2}, s{R_T}, v{V_LIN}
        v_add_u32 v{V_T3}, s{R_PFL}, v{V_KXL}
        """)
    LNW=a.lab('NW')
    a(f"""
    ds_write_b128 v{V_LINW}, v[{MB}:{MB+3}] offset:{LDS_M}
    ds_write_b128 v{V_LINW}, v[{MB+4}:{MB+7}] offset:{LDS_M+4096}
    s_cmp_lt_u32 s{R_WAVE}, 2
    s_cbranch_scc0 {LNW}
    ds_write_b128 v{V_LINW}, v[{MB+8}:{MB+11}] offset:{LDS_M+8192}
    {LNW}:
    """)
    prework()
    a('s_waitcnt lgkmcnt(0)\ns_branch REC_BC\nREC_LOOP:')
    prework()
    LP=a.lab('PM'); LP0=a.lab('PM0')
    a(f"""
    s_add_u32 s{R_T2}, s{R_SL0}, 4096
    s_add_u32 s{R_T3}, s{R_SL0}, 8192
    """)
    if DELAY_M: a(f's_sleep {DELAY_M}')
    a(f"""
    s_cmp_lt_u32 s{R_WAVE}, 2
    s_cbranch_scc1 {LP0}
    {LP}:
    buffer_load_dwordx4 v[{MB}:{MB+3}], v{V_LINW}, {SRD_WS}, s{R_SL0} offen sc1
    buffer_load_dwordx4 v[{MB+4}:{MB+7}], v{V_LINW}, {SRD_WS}, s{R_T2} offen sc1
    s_waitcnt vmcnt(0)
    """)
    maxchain(a,[MB+1,MB+3,MB+5,MB+7])
    poll_tail(a,LP)
    pt(a,0)
    a(f"""
    ds_write_b128 v{V_LINW}, v[{MB}:{MB+3}] offset:{LDS_M}
    ds_write_b128 v{V_LINW}, v[{MB+4}:{MB+7}] offset:{LDS_M+4096}
    s_waitcnt lgkmcnt(0)
    s_branch REC_BC2
    {LP0}:
    buffer_load_dwordx4 v[{MB}:{MB+3}], v{V_LINW}, {SRD_WS}, s{R_SL0} offen sc1
    buffer_load_dwordx4 v[{MB+4}:{MB+7}], v{V_LINW}, {SRD_WS}, s{R_T2} offen sc1
    buffer_load_dwordx4 v[{MB+8}:{MB+11}], v{V_LINW}, {SRD_WS}, s{R_T3} offen sc1
    s_waitcnt vmcnt(0)
    """)
    maxchain(a,[MB+1,MB+3,MB+5,MB+7,MB+9,MB+11])
    poll_tail(a,LP0)
    pt(a,0)
    a(f"""
    ds_write_b128 v{V_LINW}, v[{MB}:{MB+3}] offset:{LDS_M}
    ds_write_b128 v{V_LINW}, v[{MB+4}:{MB+7}] offset:{LDS_M+4096}
    ds_write_b128 v{V_LINW}, v[{MB+8}:{MB+11}] offset:{LDS_M+8192}
    s_waitcnt lgkmcnt(0)
    s_branch REC_BC2
    REC_BC:
    """)
    pt(a,0)
    a('REC_BC2:\ns_barrier')
    pt(a,'bcast')
    for st in range(10): a(f'ds_read_b128 v[{V_A+4*st}:{V_A+4*st+3}], v{V_LIN} offset:{LDS_M+st*1024}')
    for k in range(3): a(f'ds_read_b128 v[{V_C+4*k}:{V_C+4*k+3}], v{V_T2} offset:{k*1024}')
    for t in range(3): a(f'ds_read_b64 v[{V_KX+2*t}:{V_KX+2*t+1}], v{V_T3} offset:{(12+t)*1024}')
    L3=a.lab('A3'); LJ=a.lab('AJ'); LV=a.lab('AV'); LX1=a.lab('AX'); LS=a.lab('AS'); LB=a.lab('AB')
    def smf(nt, groups=(), early_barrier=None):
        groups=list(groups); gi=0
        for st in range(10):
            a(f's_waitcnt lgkmcnt({15-st})')
            for t in range(nt):
                r=wqk(t,st)
                a(f'v_smfmac_f32_16x16x64_bf16 v[{V_D+4*t}:{V_D+4*t+3}], v[{V_A+4*st}:{V_A+4*st+3}], a[{r}:{r+7}], v{V_IDX}')
            if early_barrier is not None and st==early_barrier-1: a('s_barrier')
            while gi<len(groups) and gi<((st+1)*len(groups)+9)//10 and st>=1:
                for x in groups[gi]: a(x)
                gi+=1
        assert gi==len(groups)
    def fold(nt, base):
        for t in range(nt):
            d=base+4*t
            a(f'v_add_f32 v{d}, v{d}, v{d+1}\nv_add_f32 v{d+2}, v{d+2}, v{d+3}')
    def u_groups():
        g=[]
        for k,CT in enumerate((R_CT0,R_CT1,R_CT2)):
            g.append([f's_lshl_b32 s{R_T}, s{CT}, 14', f's_add_u32 s{R_T}, s{R_T}, s{R_UW}',
                      f'buffer_store_dword v{V_UP+2*k}, v{V_UO}, {SRD_WS}, s{R_T} offen {KM_FLAGS}'])
        return g
    N=V_NEG1
    mlo=f's_mov_b64 exec, s[{R_MLO}:{R_MHI}]'; full='s_mov_b64 exec, -1'
    def km_groups():
        return [[f's_add_u32 s{R_T}, s{R_KW}, {t*16384}', f's_mov_b64 exec, s[{R_KMLO}:{R_KMHI}]',
                 f'buffer_store_dwordx2 v[{V_K+2*t}:{V_K+2*t+1}], v{V_KMO}, {SRD_WS}, s{R_T} offen {KM_FLAGS}', full] for t in range(3)]
    def rs_S():
        return [[f's_add_u32 s{R_T}, s{R_SL2}, s{R_SI}', mlo, f'buffer_store_dwordx2 v[{N}:{N+1}], v{V_SPM}, {SRD_WS}, s{R_T} offen {LOC}',
                 f'buffer_store_dwordx4 v[{N}:{N+3}], v{V_SP}, {SRD_WS}, s{R_T} offen offset:256 {LOC}', full],
                [f's_add_u32 s{R_T}, s{R_SL2}, s{R_SI}', mlo, f'buffer_store_dwordx4 v[{N}:{N+3}], v{V_SP}, {SRD_WS}, s{R_T} offen offset:768 {LOC}', full]]
    def rs_V():
        return [[f's_add_u32 s{R_T}, s{R_VO}, s{R_SL2}', mlo]+[f'buffer_store_dwordx2 v[{N}:{N+1}], v{V_MST}, {SRD_WS}, s{R_T} offen offset:{t*256} {LOC}' for t in range(3)]+[full]]
    def rs_GM(which):
        CT,RG=((R_CT0,R_G0),(R_CT1,R_G1),(R_CT2,R_G2))[which]
        return [[f's_add_u32 s{R_T}, s{R_SG2}, s{RG}', mlo, f'buffer_store_dwordx4 v[{N}:{N+3}], v{V_SP}, {SRD_WS}, s{R_T} offen sc1', full],
                [f's_lshl_b32 s{R_T}, s{CT}, 8', f's_add_u32 s{R_T}, s{R_T}, s{R_SL3}', mlo,
                 f'buffer_store_dwordx2 v[{N}:{N+1}], v{V_MST}, {SRD_WS}, s{R_T} offen {LOC}', full]]
    rsm=[[f's_add_u32 s{R_T}, s{R_SL2}, s{R_SI}', mlo, f'buffer_store_dwordx2 v[{N}:{N+1}], v{V_SPM}, {SRD_WS}, s{R_T} offen {LOC}', full]]
    rst=[[f's_add_u32 s{R_T}, s{R_SL2}, s{R_SST}', mlo, f'buffer_store_dwordx4 v[{N}:{N+3}], v{V_SP}, {SRD_WS}, s{R_T} offen {LOC}', full]]
    rsv=[[f's_add_u32 s{R_T}, s{R_VO}, s{R_SL2}', 's_mov_b32 exec_hi, 0xffff', f'buffer_store_dwordx4 v[{N}:{N+3}], v{V_LIN}, {SRD_WS}, s{R_T} offen {LOC}', full]]
    WG=[rsm, rst, rst, rsv]
    LA=[a.lab('PA') for _ in range(3)]; LAE=a.lab('PAE')
    a(f's_cmp_eq_u32 s{R_WAVE}, 3\ns_cbranch_scc1 {L3}')
    smf(2)
    pt(a,'smf')
    a(f"""
    s_lshl_b32 s{R_T}, s{R_WAVE}, 8
    v_add_u32 v{V_T0}, s{R_T}, v{V_TW}
    s_lshl_b32 s{R_T}, s{R_WAVE}, 9
    v_add_u32 v{V_T1}, s{R_T}, v{V_TWK}
    s_nop 2
    """)
    fold(2,V_D)
    a(f"""
    v_cvt_pk_bf16_f32 v{V_D}, v{V_D}, v{V_D+2}
    v_cvt_pk_bf16_f32 v{V_D+4}, v{V_D+4}, v{V_D+6}
    ds_write_b32 v{V_T0}, v{V_D}
    ds_write_b32 v{V_T1}, v{V_D+4}
    s_branch {LJ}
    {L3}:
    """)
    smf(3, early_barrier=(EB if EARLYB else None))
    pt(a,'smf')
    a('s_nop 6')
    fold(3,V_D)
    for t in range(3): a(f'v_cvt_pk_bf16_f32 v{V_D+4*t}, v{V_D+4*t}, v{V_D+4*t+2}')
    for t in range(3): a(f'ds_write_b32 v{V_TW}, v{V_D+4*t} offset:{768+t*256}')
    a(f's_waitcnt lgkmcnt(0)')
    if not EARLYB: a('s_barrier')
    a(f's_branch {LV}')
    a(f'{LJ}:')
    a('s_waitcnt lgkmcnt(0)\ns_barrier')
    pt(a,1)
    for t in range(3): a(f'ds_read_b64_tr_b16 v[{V_Q+2*t}:{V_Q+2*t+1}], v{V_TR} offset:{t*256}')
    a(f's_cmp_eq_u32 s{R_WAVE}, 0\ns_cbranch_scc0 {LX1}')
    for t in range(3): a(f'ds_read_b64_tr_b16 v[{V_K+2*t}:{V_K+2*t+1}], v{V_TRK} offset:{t*512}')
    a('s_waitcnt lgkmcnt(0)')
    for t in range(3):
        c='0' if t==0 else f'v[{V_SO}:{V_SO+3}]'
        a(f'v_mfma_f32_16x16x16_bf16 v[{V_SO}:{V_SO+3}], v[{V_K+2*t}:{V_K+2*t+1}], v[{V_Q+2*t}:{V_Q+2*t+1}], {c}')
    for i in range(7): a(f'v_mov_b32 v{V_U+i}, 0')
    publish_SM(a,V_SO,R_SL0,LOC)
    for i in range(7,12): a(f'v_mov_b32 v{V_U+i}, 0')
    for g in WG[0]:
        for x in g: a(x)
    a(f's_branch {LB}\n{LX1}:')
    a('s_waitcnt lgkmcnt(0)')
    for t in range(3):
        c='0' if t==0 else f'v[{V_SO}:{V_SO+3}]'
        a(f'v_mfma_f32_16x16x16_bf16 v[{V_SO}:{V_SO+3}], v[{V_KX+2*t}:{V_KX+2*t+1}], v[{V_Q+2*t}:{V_Q+2*t+1}], {c}')
    for i in range(7): a(f'v_mov_b32 v{V_U+i}, 0')
    publish_ST(a,V_SO,R_SL0,LOC)
    for i in range(7,12): a(f'v_mov_b32 v{V_U+i}, 0')
    LW2=a.lab('W2'); LW1=a.lab('W1')
    a(f's_cmp_eq_u32 s{R_WAVE}, 2\ns_cbranch_scc1 {LW2}')
    for g in WG[1]:
        for x in g: a(x)
    a(f's_branch {LW1}\n{LW2}:')
    for g in WG[2]:
        for x in g: a(x)
    a(f'{LW1}:')
    a(f's_branch {LB}\n{LV}:')
    for t in range(3): a(f'ds_read_b64_tr_b16 v[{V_Q+2*t}:{V_Q+2*t+1}], v{V_TR} offset:{768+t*256}')
    a('s_waitcnt lgkmcnt(0)')
    if PROF: pt(a,1)
    publish_V(a,[V_Q,V_Q+2,V_Q+4],R_SL0,LOC)
    for i in range(12): a(f'v_mov_b32 v{V_U+i}, 0')
    for g in WG[3]:
        for x in g: a(x)
    a(f'{LB}:')
    pt(a,2)
    LP=a.lab('PS')
    a(f"""
    s_mul_i32 s{R_T2}, s{R_WAVE}, 3072
    s_add_u32 s{R_T2}, s{R_T2}, {XL_V}
    s_add_u32 s{R_T2}, s{R_T2}, s{R_SL0}
    s_mul_i32 s{R_T}, s{R_WAVE}, {40*65536}
    s_add_u32 s{R_PFC}, s{R_T}, s{R_CXO}
    s_mul_i32 s{R_T}, s{R_WAVE}, 3072
    s_add_u32 s{R_PFM}, s{R_T}, s{R_PFN}
    s_min_u32 s{R_T}, s{R_WAVE}, 2
    s_lshl_b32 s{R_PFK}, s{R_T}, 16
    s_add_u32 s{R_PFK}, s{R_PFK}, s{R_KX}
    s_lshl_b32 s{R_T}, s{R_T}, 10
    s_add_u32 s{R_PFKM}, s{R_T}, s{R_PFN}
    s_add_u32 s{R_PFKM}, s{R_PFKM}, {12*1024}
    s_cmp_eq_u32 s{R_STEP}, 63
    s_cbranch_scc1 REC_LAST
    """)
    step_voffs(a)
    if DELAY_S: a(f's_sleep {DELAY_S}')
    a(f'{LP}:')
    SR=V_SR; SM=V_SM
    for st in range(3):
        a(f'buffer_load_dwordx4 v[{V_VF+4*st}:{V_VF+4*st+3}], v{V_LIN}, {SRD_WS}, s{R_T2} offen offset:{st*1024} sc1')
    for p in range(4):
        a(f'buffer_load_dwordx4 v[{SR+4*p}:{SR+4*p+3}], v{V_SLD}, {SRD_WS}, s{R_SL0} offen offset:{p*1280} sc1')
        a(f'buffer_load_dword v{SM+p}, v{V_SLDM}, {SRD_WS}, s{R_SL0} offen offset:{p*1280} sc1')
    a('s_waitcnt vmcnt(0)')
    f=V_VF
    maxchain(a,[f+1,f+3,f+5,f+7,f+9,f+11,SR,SR+4,SR+8,SR+12,SM,SM+1,SM+2,SM+3])
    poll_tail(a,LP)
    pt(a,3)
    um=[]
    for st in range(3):
        for k in range(3):
            d=V_U+4*k
            um.append(f'v_smfmac_f32_16x16x64_bf16 v[{d}:{d+3}], v[{V_VF+4*st}:{V_VF+4*st+3}], v[{wo(k,st)}:{wo(k,st)+7}], v{V_IDX}')
    E=V_E
    sm=[f'v_pk_add_f32 v[{SR}:{SR+1}], v[{SR}:{SR+1}], v[{SR+4}:{SR+5}]',
        f'v_pk_add_f32 v[{SR+2}:{SR+3}], v[{SR+2}:{SR+3}], v[{SR+6}:{SR+7}]',
        f'v_pk_add_f32 v[{SR+8}:{SR+9}], v[{SR+8}:{SR+9}], v[{SR+12}:{SR+13}]',
        f'v_pk_add_f32 v[{SR+10}:{SR+11}], v[{SR+10}:{SR+11}], v[{SR+14}:{SR+15}]',
        f'v_pk_add_f32 v[{SM}:{SM+1}], v[{SM}:{SM+1}], v[{SM+2}:{SM+3}]',
        f'v_pk_add_f32 v[{E}:{E+1}], v[{SR}:{SR+1}], v[{SR+8}:{SR+9}]',
        f'v_pk_add_f32 v[{E+2}:{E+3}], v[{SR+2}:{SR+3}], v[{SR+10}:{SR+11}]',
        f'v_add_f32 v{E+4}, v{SM}, v{SM+1}',
        f'v_max3_f32 v{V_MX}, v{E}, v{E+1}, v{E+2}',
        f'v_max3_f32 v{V_MX}, v{E+3}, v{E+4}, v{V_MX}', 's_nop 1',
        f'v_max_f32_dpp v{V_MX}, v{V_MX}, v{V_MX} row_ror:8 row_mask:0xf bank_mask:0xf',
        f'v_mov_b32 v{V_MX2}, v{V_MX}', 's_nop 1', f'v_permlane16_swap_b32 v{V_MX}, v{V_MX2}', 's_nop 0',
        f'v_max_f32 v{V_MX}, v{V_MX}, v{V_MX2}', f'v_mov_b32 v{V_MX2}, v{V_MX}', 's_nop 1',
        f'v_permlane32_swap_b32 v{V_MX}, v{V_MX2}', 's_nop 0', f'v_max_f32 v{V_MX}, v{V_MX}, v{V_MX2}',
        f'v_mul_f32 v{V_MX}, s{R_CSC}, v{V_MX}']
    for i in range(5): sm.append(f'v_fma_f32 v{E+i}, v{E+i}, s{R_CSC}, -v{V_MX}')
    for i in (4,0,1,2,3): sm.append(f'v_exp_f32 v{E+i}, v{E+i}')
    sm+= [f'v_mov_b32_dpp v{E+5}, v{E+4} row_ror:8 row_mask:0xf bank_mask:0xf',
          f'v_cvt_pk_bf16_f32 v{V_P}, v{E}, v{E+1}', f'v_cvt_pk_bf16_f32 v{V_P+1}, v{E+2}, v{E+3}',
          f'v_cvt_pk_bf16_f32 v{V_P+4}, v{E+4}, v{E+5}',
          f'v_mov_b32_dpp v{V_P+2}, v{V_P} row_ror:8 row_mask:0xf bank_mask:0xf',
          f'v_mov_b32_dpp v{V_P+3}, v{V_P+1} row_ror:8 row_mask:0xf bank_mask:0xf']
    pf=[]
    if not NOPF:
        for k2,CT in enumerate((R_CT0,R_CT1,R_CT2)):
            pf.append([f's_lshl_b32 s{R_T}, s{CT}, 16', f's_add_u32 m0, s{R_PFM}, {k2*1024}', f's_add_u32 s{R_T}, s{R_T}, s{R_PFC}',
                       f'buffer_load_dwordx4 v{V_CO}, {SRD_WS}, s{R_T} offen {ldf} lds'])
        pf.append([f's_mov_b32 m0, s{R_PFKM}', 's_nop 0', f'buffer_load_dwordx4 v{V_LIN}, {SRD_WS}, s{R_PFK} offen {ldf} lds'])
    uf=[]
    for t in range(3):
        d=V_U+4*t
        uf+= [f'v_add_f32 v{d}, v{d}, v{d+1}', f'v_add_f32 v{d+2}, v{d+2}, v{d+3}']
    for t in range(3): uf.append(f'v_cvt_pk_bf16_f32 v{V_UP+2*t}, v{V_U+4*t}, v{V_U+4*t+2}')
    idx=[i for i,x in enumerate(sm) if x.startswith('v_exp_f32')][0]
    sm=sm[:idx]+sm[idx:idx+5]+uf+sm[idx+5:]
    k=0; pi=0
    out=[]
    for i,x in enumerate(sm):
        if k<len(um) and i%2==0 and i<20: out.append(um[k]); k+=1
        if x.startswith('s_nop') and pi<len(pf):
            out.extend(pf[pi]); pi+=1
        else: out.append(x)
    assert k==len(um) and pi==len(pf)
    for x in out: a(x)
    def u_fold():
        fold(3,V_U)
        for k in range(3): a(f'v_cvt_pk_bf16_f32 v{V_UP+2*k}, v{V_U+4*k}, v{V_U+4*k+2}')
    def u_lds():
        a(f's_lshl_b32 s{R_T}, s{R_WAVE}, 8\nv_add_u32 v{V_T0}, s{R_T}, v{V_UO}')
        for k in range(3): a(f'ds_write_b32 v{V_T0}, v{V_UP+2*k} offset:{LDS_U+k*1024}')
    def w3_stores():
        for k in range(3): a(f'ds_read_b128 v[{V_RD+4*k}:{V_RD+4*k+3}], v{V_LIN} offset:{LDS_U+k*1024}')
        for t in range(3): a(f'ds_read_b64_tr_b16 v[{V_K+2*t}:{V_K+2*t+1}], v{V_TRK} offset:{t*512}')
        a('s_waitcnt lgkmcnt(0)')
        for k,CT in enumerate((R_CT0,R_CT1,R_CT2)):
            a(f"""
            s_lshl_b32 s{R_T}, s{CT}, 14
            s_add_u32 s{R_T}, s{R_T}, s{R_UM}
            buffer_store_dwordx4 v[{V_RD+4*k}:{V_RD+4*k+3}], v{V_UG}, {SRD_WS}, s{R_T} offen {KM_FLAGS}
            """)
        a(f's_mov_b64 exec, s[{R_KMLO}:{R_KMHI}]')
        for t in range(3):
            a(f's_add_u32 s{R_T}, s{R_KM}, {t*16384}\nbuffer_store_dwordx2 v[{V_K+2*t}:{V_K+2*t+1}], v{V_KMO}, {SRD_WS}, s{R_T} offen {KM_FLAGS}')
        a('s_mov_b64 exec, -1')
    pt(a,'Pready')
    a('s_nop 1')
    for k in range(3):
        d=V_O+4*k
        a(f'v_mfma_f32_16x16x32_bf16 v[{d}:{d+3}], v[{V_C+4*k}:{V_C+4*k+3}], v[{V_P}:{V_P+3}], 0')
    a(f'v_mfma_f32_16x16x32_bf16 v[{V_SS}:{V_SS+3}], v[{V_ONE}:{V_ONE+3}], v[{V_P}:{V_P+3}], 0')
    a('s_nop 2')
    for k in range(3):
        d=V_O+4*k
        a(f'v_mfma_f32_16x16x16_bf16 v[{d}:{d+3}], v[{V_UP+2*k}:{V_UP+2*k+1}], v[{V_P+4}:{V_P+5}], v[{d}:{d+3}]')
    a(f'v_mfma_f32_16x16x16_bf16 v[{V_SS}:{V_SS+3}], v[{V_ONE}:{V_ONE+1}], v[{V_P+4}:{V_P+5}], v[{V_SS}:{V_SS+3}]')
    u_lds()
    if ONES:
        a(f"""
        s_nop 2
        v_rcp_f32 v{V_SUM}, v{V_SS}
        s_nop 0
        v_mov_b32 v{V_SUM2}, v{V_SUM}
        """)
    else:
        a(f"""
        v_pk_add_f32 v[{E}:{E+1}], v[{E}:{E+1}], v[{E+2}:{E+3}]
        v_add_f32 v{V_SUM}, v{E}, v{E+1}
        v_add_f32 v{V_SUM}, v{V_SUM}, v{E+4}
        s_nop 1
        v_add_f32_dpp v{V_SUM}, v{V_SUM}, v{V_SUM} row_ror:8 row_mask:0xf bank_mask:0xf
        v_mov_b32 v{V_SUM2}, v{V_SUM}
        s_nop 1
        v_permlane16_swap_b32 v{V_SUM}, v{V_SUM2}
        s_nop 0
        v_add_f32 v{V_SUM}, v{V_SUM}, v{V_SUM2}
        v_mov_b32 v{V_SUM2}, v{V_SUM}
        s_nop 1
        v_permlane32_swap_b32 v{V_SUM}, v{V_SUM2}
        s_nop 0
        v_add_f32 v{V_SUM}, v{V_SUM}, v{V_SUM2}
        v_rcp_f32 v{V_SUM}, v{V_SUM}
        s_nop 0
        v_mov_b32 v{V_SUM2}, v{V_SUM}
        """)
    for k in range(3):
        d=V_O+4*k
        a(f'v_pk_mul_f32 v[{d}:{d+1}], v[{d}:{d+1}], v[{V_SUM}:{V_SUM2}]\nv_pk_mul_f32 v[{d+2}:{d+3}], v[{d+2}:{d+3}], v[{V_SUM}:{V_SUM2}]')
    pt(a,'PG')
    for k in range(3):
        a(f'ds_write_b128 v{V_LINW}, v[{V_O+4*k}:{V_O+4*k+3}] offset:{LDS_R2+k*4096}')
    a('s_waitcnt lgkmcnt(0)\ns_barrier')
    pt(a,4)
    LN=a.lab('BN'); LW3=a.lab('W3'); LC=a.lab('CE')
    a(f"""
    s_cmp_eq_u32 s{R_WAVE}, 3
    s_cbranch_scc1 {LW3}
    s_cmp_lt_u32 s{R_WAVE}, s{R_NT}
    s_cbranch_scc0 {LN}
    s_lshl_b32 s{R_T}, s{R_WAVE}, 12
    v_add_u32 v{V_T0}, s{R_T}, v{V_RED}
    ds_read_b128 v[{V_RD}:{V_RD+3}], v{V_T0} offset:{LDS_R2}
    ds_read_b128 v[{V_RD+4}:{V_RD+7}], v{V_T0} offset:{LDS_R2+1024}
    s_waitcnt lgkmcnt(0)
    v_pk_add_f32 v[{V_RD}:{V_RD+1}], v[{V_RD}:{V_RD+1}], v[{V_RD+4}:{V_RD+5}]
    v_pk_add_f32 v[{V_RD+2}:{V_RD+3}], v[{V_RD+2}:{V_RD+3}], v[{V_RD+6}:{V_RD+7}]
    s_nop 1
    """)
    for i in range(4): a(f'v_add_f32_dpp v{V_GP+i}, v{V_RD+i}, v{V_RD+i} row_ror:8 row_mask:0xf bank_mask:0x3')
    a(f'buffer_store_dwordx4 v[{V_GP}:{V_GP+3}], v{V_SPG}, {SRD_WS}, s{R_GST} offen sc1')
    a(f'{LN}:')
    pt(a,5)
    LP=a.lab('PG')
    a(f"""
    s_add_u32 s{R_STEP}, s{R_STEP}, 1
    s_add_u32 s{R_T2}, s{R_SG0}, s{R_GLD}
    """)
    slot_regs(a)
    a(f"""
    s_cmp_lt_u32 s{R_WAVE}, s{R_NT}
    s_cbranch_scc0 {LC}
    """)
    if DELAY_G: a(f's_sleep {DELAY_G}')
    a(f'{LP}:')
    for q in range(4):
        a(f'buffer_load_dwordx4 v[{V_RD+4*q}:{V_RD+4*q+3}], v{V_GLD}, {SRD_WS}, s{R_T2} offen offset:{q*512} sc1')
    a('s_waitcnt vmcnt(0)')
    maxchain(a,[V_RD,V_RD+4,V_RD+8,V_RD+12])
    poll_tail(a,LP)
    pt(a,6)
    a(f"""
    v_pk_add_f32 v[{V_RD}:{V_RD+1}], v[{V_RD}:{V_RD+1}], v[{V_RD+4}:{V_RD+5}]
    v_pk_add_f32 v[{V_RD+2}:{V_RD+3}], v[{V_RD+2}:{V_RD+3}], v[{V_RD+6}:{V_RD+7}]
    v_pk_add_f32 v[{V_RD+8}:{V_RD+9}], v[{V_RD+8}:{V_RD+9}], v[{V_RD+12}:{V_RD+13}]
    v_pk_add_f32 v[{V_RD+10}:{V_RD+11}], v[{V_RD+10}:{V_RD+11}], v[{V_RD+14}:{V_RD+15}]
    v_pk_add_f32 v[{V_RD}:{V_RD+1}], v[{V_RD}:{V_RD+1}], v[{V_RD+8}:{V_RD+9}]
    v_pk_add_f32 v[{V_RD+2}:{V_RD+3}], v[{V_RD+2}:{V_RD+3}], v[{V_RD+10}:{V_RD+11}]
    s_nop 1
    """)
    for i in range(4): a(f'v_add_f32_dpp v{V_RD+i}, v{V_RD+i}, v{V_RD+i} row_ror:8 row_mask:0xf bank_mask:0xf')
    a(f"""
    s_mov_b64 exec, s[{R_MLO}:{R_MHI}]
    v_cvt_pk_bf16_f32 v{V_MP}, v{V_RD}, v{V_RD+1}
    v_cvt_pk_bf16_f32 v{V_MP+1}, v{V_RD+2}, v{V_RD+3}
    s_mov_b64 exec, -1
    buffer_store_dwordx2 v[{V_MP}:{V_MP+1}], v{V_MSG}, {SRD_WS}, s{R_MST} offen {LOC}
    """)
    a(f's_branch {LC}\n{LW3}:')
    pt(a,5)
    if FUSED: progress(a,f's{R_STEP}')
    if W3DELAY: a(f's_sleep {W3DELAY}')
    if not NOST: w3_stores()
    if FUSED:
        LK=a.lab('KV'); LK4=a.lab('K4')
        a(f"""
        s_cmp_eq_u32 s{R_STEP}, 2
        s_cbranch_scc0 {LK4}
        """)
        a(f'v_mov_b32 v{V_T1}, 128')
        kvc_wait(a, off=96, thr=f'v{V_T1}')
        a(f"""
        {LK4}:
        s_add_u32 s{R_T2}, s{R_STEP}, 2
        s_and_b32 s{R_T}, s{R_T2}, 7
        s_cmp_eq_u32 s{R_T}, 0
        s_cbranch_scc0 {LK}
        s_cmp_lt_u32 s{R_T2}, 64
        s_cbranch_scc0 {LK}
        s_lshr_b32 s{R_T2}, s{R_T2}, 3
        """)
        kvc_wait(a, big=True)
        a(f'{LK}:')
    a('s_waitcnt vmcnt(0)')
    a(f's_add_u32 s{R_STEP}, s{R_STEP}, 1')
    slot_regs(a)
    if PROF: a('s_memtime s[16:17]')
    a(f'{LC}:')
    pf_advance(a)
    a(f"""
    s_add_u32 s{R_KM}, s{R_KM}, 256
    s_add_u32 s{R_UM}, s{R_UM}, 256
    """)
    if PROF:
        a(f's_cmp_eq_u32 s{R_WAVE}, 3\ns_cbranch_scc1 PTX\ns_cmp_lt_u32 s{R_WAVE}, s{R_NT}\ns_cbranch_scc1 PTX\ns_memtime s[16:17]\nPTX:')
    pt(a,7)
    pt_acc(a)
    if PROF:
        LS3=a.lab('S3')
        a(f"""
        s_cmp_eq_u32 s{R_WAVE}, 3
        s_cbranch_scc0 {LS3}
        s_lshl_b32 s72, s{R_G}, 4
        s_add_u32 s72, s72, s{R_I}
        s_lshl_b32 s72, s72, 8
        s_lshl_b32 s73, s{R_STEP}, 2
        s_add_u32 s72, s72, s73
        s_add_u32 s72, s72, {WS_TS+65536}
        v_mov_b32 v{V_T0}, s71
        s_mov_b64 exec, 1
        buffer_store_dword v{V_T0}, off, {SRD_WS}, s72
        s_mov_b64 exec, -1
        {LS3}:
        """)
    a('s_branch REC_LOOP\nREC_LAST:')
    LP=a.lab('PV')
    a(f'{LP}:')
    for st in range(3):
        a(f'buffer_load_dwordx4 v[{V_VF+4*st}:{V_VF+4*st+3}], v{V_LIN}, {SRD_WS}, s{R_T2} offen offset:{st*1024} sc1')
    a('s_waitcnt vmcnt(0)')
    maxchain(a,[f+1,f+3,f+5,f+7,f+9,f+11])
    poll_tail(a,LP)
    for x in um: a(x)
    a('s_nop 7')
    u_fold()
    u_lds()
    LE=a.lab('RL')
    a(f's_waitcnt lgkmcnt(0)\ns_barrier\ns_cmp_eq_u32 s{R_WAVE}, 3\ns_cbranch_scc0 {LE}')
    w3_stores()
    if FUSED:
        a('s_waitcnt vmcnt(0)')
        progress(a,'64')
    a(f'{LE}:')
```

```python
import sys, os
from common import *
import gemm
from gemm import *
import rec, fin, parta
from build import load_args, srd, emit, P_AX,P_AWQKV,P_AWO,P_BX,P_MEM,P_WQ,P_WK,P_WV,P_WO,P_OUT,P_DBG,P_WS
KN='concat_heads__linear_attn_block__memory_aug_recurrent_mem_tr__prompt_kernel'
LDS_TOT=max(rec.LDS_REC,parta.LDS_KV,LDS_GEMM,fin.LDS_FIN)+64
LDS_TK=LDS_TOT-64
SRD_D='s[96:99]'
W_ITEM=100; W_SPIN=101
D_Q=80; D_KVC=96; D_QD=128; D_A1=160; D_A2=164; D_AS=168; D_START=64; D_H0=172; D_TOT=176; D_MODE=180
R_SLOW=26
DECIDE_SPIN=20000
FAST_NEED=int(os.environ.get('FAST_NEED','32'))
QL=[('Q',0,64),('F',0,32),('Q',64,32),('A1',0,80),('F',32,32),('Q',96,32),('F',64,32),('Q',128,32),('A2',0,20),
    ('F',96,32),('Q',160,32),('AS',0,64),('F',128,32),('Q',192,32),('A3',0,32),('F',160,32),('Q',224,32),('F',192,64)]
if os.environ.get('QOLD','0')=='1':
    QL=[('KVC',0,512),('A1',0,80),('Q',0,256),('A2',0,20),('AS',0,64),('A3',0,32),('F',0,256)]
if os.environ.get('NOFIN','0')=='1': QL=[q for q in QL if q[0]!='F']
if os.environ.get('NOWORK','0')=='1': QL=[]
Q_END=sum(q[2] for q in QL)
TYPES={'KVC1':7,'KVC':0,'Q':1,'A1':2,'A2':3,'AS':4,'A3':5,'F':6}
W_TYPE=94; W_PAR=93
W_KQ=30
W_XCC=31
D_KQ=32
ST='sc1'
FSLEEP=int(os.environ.get('FSLEEP','20'))
FSLEEP2=int(os.environ.get('FSLEEP2','6'))
WARM_FROM=int(os.environ.get('WARM_FROM','56'))
WARM_AHEAD=int(os.environ.get('WARM_AHEAD','3'))


def wait_ge(a, off_expr, val, wv='s48'):
    L=a.lab('WG'); D=a.lab('WD'); X=a.lab('WX')
    a(f'''
    s_cmp_eq_u32 {wv}, 0
    s_cbranch_scc0 {X}
    s_mov_b32 s95, {off_expr}
    {L}:
    buffer_load_dword v1, off, {SRD_D}, s95 sc1
    s_waitcnt vmcnt(0)
    v_cmp_gt_u32 vcc, {val}, v1
    s_cbranch_vccz {X}
    s_sleep 16
    s_sub_u32 s{W_SPIN}, s{W_SPIN}, 1
    s_cbranch_scc0 {L}
    s_mov_b32 s{W_SPIN}, 0
    {X}:
    s_barrier
    ''')
def signal(a, off_expr, wv='s48'):
    X=a.lab('SG')
    a(f'''
    s_waitcnt vmcnt(0)
    s_barrier
    s_cmp_eq_u32 {wv}, 0
    s_cbranch_scc0 {X}
    s_mov_b32 s95, {off_expr}
    v_mov_b32 v1, 1
    s_mov_b64 exec, 1
    buffer_atomic_add v1, off, {SRD_D}, s95
    s_mov_b64 exec, -1
    {X}:
    ''')

def wave_id(a):
    a('v_lshrrev_b32 v1, 6, v0\ns_nop 0\nv_readfirstlane_b32 s48, v1\ns_nop 3')

def kernel(a):
    TB=2
    a('s_cmp_ge_u32 s2, 256\ns_cbranch_scc1 K_END')
    load_args(a)
    srd(a,40,P_WS,WS_SIZE)
    srd(a,44,P_DBG,256)
    a(f'''
    s_getreg_b32 s70, hwreg(HW_REG_XCC_ID)
    s_and_b32 s70, s70, 7
    v_cmp_eq_u32 vcc, 0, v0
    s_and_saveexec_b64 s[72:73], vcc
    s_cbranch_execz K_NOAT
    s_lshl_b32 s71, s70, 2
    v_mov_b32 v1, 1
    v_mov_b32 v3, 1
    s_mov_b32 s74, {D_TOT}
    buffer_atomic_add v1, off, s[44:47], s71 sc0
    buffer_atomic_add v3, off, s[44:47], s74 sc0
    s_waitcnt vmcnt(0)
    v_readfirstlane_b32 s71, v1
    v_readfirstlane_b32 s75, v3
    s_nop 3
    s_mov_b32 s76, 0
    s_cmp_lt_u32 s75, 128
    s_cbranch_scc1 K_DECIDE
    s_cmp_ge_u32 s70, 4
    s_cbranch_scc1 K_DECIDED
    s_cmp_ge_u32 s71, 32
    s_cbranch_scc1 K_DECIDED
    K_DECIDE:
    s_mov_b32 s77, {DECIDE_SPIN}
    K_DLOOP:
    s_mov_b32 s74, 0
    buffer_load_dwordx4 v[4:7], off, s[44:47], s74 sc1
    buffer_load_dwordx4 v[8:11], off, s[44:47], s74 offset:16 sc1
    s_mov_b32 s74, {D_TOT}
    buffer_load_dwordx2 v[12:13], off, s[44:47], s74 sc1
    s_waitcnt vmcnt(0)
    v_readfirstlane_b32 s76, v13
    s_nop 3
    s_cmp_lg_u32 s76, 0
    s_cbranch_scc1 K_DECIDED
    v_min_u32 v4, v4, v5
    v_min_u32 v6, v6, v7
    v_min_u32 v4, v4, v6
    v_min_u32 v8, v8, v9
    v_min_u32 v10, v10, v11
    v_min_u32 v8, v8, v10
    s_nop 0
    v_readfirstlane_b32 s78, v4
    v_readfirstlane_b32 s79, v8
    v_readfirstlane_b32 s80, v12
    s_nop 3
    s_mov_b32 s81, 0
    s_cmp_ge_u32 s78, {FAST_NEED}
    s_cbranch_scc0 K_NOTFAST
    s_cmp_ge_u32 s79, 1
    s_cbranch_scc0 K_NOTFAST
    s_mov_b32 s81, 1
    s_branch K_TRY
    K_NOTFAST:
    s_cmp_ge_u32 s80, 256
    s_cselect_b32 s81, 2, 0
    s_sub_u32 s77, s77, 1
    s_cselect_b32 s81, 2, s81
    s_cmp_eq_u32 s81, 0
    s_cbranch_scc0 K_TRY
    s_sleep 2
    s_branch K_DLOOP
    K_TRY:
    v_mov_b32 v4, s81
    v_mov_b32 v5, 0
    s_mov_b32 s74, {D_MODE}
    buffer_atomic_cmpswap v[4:5], off, s[44:47], s74 sc0
    s_waitcnt vmcnt(0)
    v_readfirstlane_b32 s76, v4
    s_nop 3
    s_cmp_eq_u32 s76, 0
    s_cselect_b32 s76, s81, s76
    K_DECIDED:
    v_mov_b32 v4, s71
    v_mov_b32 v5, s75
    v_mov_b32 v6, s76
    v_mov_b32 v2, {LDS_TK}
    ds_write_b96 v2, v[4:6]
    s_waitcnt lgkmcnt(0)
    K_NOAT:
    s_mov_b64 exec, s[72:73]
    s_barrier
    v_mov_b32 v2, {LDS_TK}
    ds_read_b96 v[4:6], v2
    s_waitcnt lgkmcnt(0)
    v_readfirstlane_b32 s71, v4
    v_readfirstlane_b32 s75, v5
    v_readfirstlane_b32 s76, v6
    s_barrier
    s_cmp_eq_u32 s76, 2
    s_cbranch_scc1 K_SLOWMODE
    s_cmp_ge_u32 s70, 4
    s_cbranch_scc1 K_OTHER
    s_cmp_ge_u32 s71, 32
    s_cbranch_scc1 WORKER_FAR
    s_lshl_b32 s{rec.R_G}, s70, 1
    s_lshr_b32 s72, s71, 4
    s_add_u32 s{rec.R_G}, s{rec.R_G}, s72
    s_and_b32 s{rec.R_I}, s71, 15
    s_mov_b32 s{R_SLOW}, 0
    s_branch K_REC
    K_SLOWMODE:
    s_cmp_ge_u32 s75, 128
    s_cbranch_scc1 WORKER_FAR
    s_lshr_b32 s{rec.R_G}, s75, 4
    s_and_b32 s{rec.R_I}, s75, 15
    s_mov_b32 s{R_SLOW}, 1
    s_branch K_REC
    WORKER_FAR:
    s_branch WORKER_T
    K_REC:
    ''')
    rec.rec_setup(a)
    if gemm.TS_ON:
        a(f'''
        s_lshl_b32 s72, s{rec.R_G}, 4
        s_add_u32 s72, s72, s{rec.R_I}
        v_mov_b32 v15, s72
        s_lshl_b32 s72, s2, 8
        s_add_u32 s72, s72, {WS_TS+27*4}
        s_mov_b64 exec, 1
        buffer_store_dword v15, off, s[40:43], s72
        s_mov_b64 exec, -1
        ''')
    ts(a,16,vt=15); ts(a,22,vt=15,real=True)
    rec.WHOOK=(lambda k: ts(a,k,vt=15,real=True)) if gemm.TS_ON else None
    rec.rec_load_weights(a,P_WQ,P_WK,P_WV,P_WO)
    ts(a,17,vt=15); ts(a,23,vt=15,real=True)
    rec.TSHOOK=lambda: ts(a,24,vt=15,real=True)
    a(f's_cmp_eq_u32 s{R_SLOW}, 1\ns_cbranch_scc1 K_RECS_FAR')
    rec.LOC=''
    rec.rec_main(a,P_MEM,ldf='sc1')
    a('s_branch K_RECDONE\nK_RECS_FAR:')
    a2=Asm(); rec.LOC='sc1'; prof=rec.PROF; rec.PROF=False; hook=rec.TSHOOK; rec.TSHOOK=None
    rec.rec_main(a2,P_MEM,ldf='sc1',slow=True)
    rec.PROF=prof; rec.TSHOOK=hook; rec.LOC=''
    for l in a2.lines:
        for lab in ('REC_LOOP','REC_BC2','REC_BC','REC_LAST'): l=l.replace(lab,'S'+lab)
        a.lines.append(l)
    a('K_RECDONE:')
    a('s_waitcnt vmcnt(0)')
    ts(a,18,vt=15); ts(a,25,vt=15,real=True)
    rec.dump_prof(a)
    a('WORKER_T:\ns_branch WORKER\nK_OTHER:')
    a('s_cmp_eq_u32 s70, 4\ns_cbranch_scc0 WORKER\ns_cmp_eq_u32 s71, 0\ns_cbranch_scc0 WORKER')
    rec.measure_parity(a)
    a('WORKER:\ns_waitcnt lgkmcnt(0)')
    load_args(a)
    srd(a,96,P_DBG,256)
    srd(a,40,P_WS,WS_SIZE)
    a(f's_mov_b32 s{W_SPIN}, 3000000')
    a(f's_getreg_b32 s{W_XCC}, hwreg(HW_REG_XCC_ID)\ns_and_b32 s{W_XCC}, s{W_XCC}, 3\ns_mov_b32 s{W_KQ}, 0')
    a('W_LOOP:')
    wave_id(a)
    a(f'''
    s_add_u32 s94, s{W_XCC}, s{W_KQ}
    s_and_b32 s94, s94, 3              ; q
    s_lshl_b32 s95, s94, 2
    s_add_u32 s95, s95, {D_KQ}
    s_cmp_ge_u32 s{W_KQ}, 4
    s_cselect_b32 s95, {D_Q}, s95
    s_barrier
    s_cmp_eq_u32 s48, 0
    s_cbranch_scc0 W_NOTK
    s_mov_b64 exec, 1
    v_mov_b32 v1, 1
    buffer_atomic_add v1, off, {SRD_D}, s95 sc0
    s_waitcnt vmcnt(0)
    v_mov_b32 v2, {LDS_TK}
    ds_write_b32 v2, v1
    s_waitcnt lgkmcnt(0)
    s_mov_b64 exec, -1
    W_NOTK:
    s_barrier
    v_mov_b32 v2, {LDS_TK}
    ds_read_b32 v1, v2
    s_waitcnt lgkmcnt(0)
    v_readfirstlane_b32 s{W_ITEM}, v1
    s_nop 3
    s_cmp_ge_u32 s{W_KQ}, 4
    s_cbranch_scc1 W_GLOBAL
    s_cmp_lt_u32 s{W_ITEM}, 144
    s_cbranch_scc1 W_KVCQ
    s_add_u32 s{W_KQ}, s{W_KQ}, 1
    s_branch W_LOOP
    W_KVCQ:
    ; q=s94, t=W_ITEM
    s_and_b32 s95, s{W_ITEM}, 7
    s_lshl_b32 s94, s94, 3
    s_add_u32 s95, s95, s94             ; h
    s_lshr_b32 s94, s{W_ITEM}, 3
    s_and_b32 s94, s94, 1
    s_lshl_b32 s94, s94, 5
    s_add_u32 s95, s95, s94             ; kind*32 + h
    s_cmp_lt_u32 s{W_ITEM}, 32
    s_cbranch_scc0 W_KVC2
    s_lshr_b32 s94, s{W_ITEM}, 4
    s_lshl_b32 s94, s94, 6
    s_add_u32 s{W_PAR}, s95, s94
    s_mov_b32 s{W_TYPE}, 7
    s_branch W_P1_FAR
    W_KVC2:
    s_sub_u32 s94, s{W_ITEM}, 32
    s_lshr_b32 s94, s94, 4
    s_add_u32 s94, s94, 1
    s_lshl_b32 s94, s94, 6
    s_add_u32 s{W_PAR}, s95, s94
    s_mov_b32 s{W_TYPE}, 0
    s_branch W_PROJ
    W_GLOBAL:
    s_cmp_ge_u32 s{W_ITEM}, {Q_END}
    s_cbranch_scc1 K_END_FAR
    ''')
    pos=0
    a(f's_mov_b32 s{W_TYPE}, 0\ns_mov_b32 s{W_PAR}, 0')
    for (t,first,cnt) in QL:
        a(f's_cmp_ge_u32 s{W_ITEM}, {pos}\ns_cselect_b32 s{W_TYPE}, {TYPES[t]}, s{W_TYPE}')
        a(f's_sub_u32 s95, s{W_ITEM}, {pos}\ns_add_u32 s95, s95, {first}\ns_cmp_ge_u32 s{W_ITEM}, {pos}\ns_cselect_b32 s{W_PAR}, s95, s{W_PAR}')
        pos+=cnt
    a(f'''
    s_cmp_eq_u32 s{W_TYPE}, 7
    s_cbranch_scc1 W_P1_FAR
    s_cmp_eq_u32 s{W_TYPE}, 6
    s_cbranch_scc1 W_FIN_FAR
    s_cmp_eq_u32 s{W_TYPE}, 5
    s_cbranch_scc1 W_A3_FAR
    s_cmp_eq_u32 s{W_TYPE}, 4
    s_cbranch_scc1 W_AS_FAR
    s_cmp_eq_u32 s{W_TYPE}, 3
    s_cbranch_scc1 W_A2_FAR
    s_branch W_PROJ
    W_P1_FAR:
    s_branch W_P1_T
    K_END_FAR:
    s_branch K_END_T
    W_FIN_FAR:
    s_branch W_FIN_T
    W_A3_FAR:
    s_branch W_A3_T
    W_AS_FAR:
    s_branch W_AS_T
    W_A2_FAR:
    s_branch W_A2_T
    W_PROJ:
    ''')
    def emit_proj(TB, P, only_kvc):
        gemm_lane_setup(a,TB)
        srd(a,32,P_BX,2048*640*2)
        srd(a,44,P_WO,32*192*640*2)
        a(f's_mul_i32 s{S_WOL}, s{S_WAVE}, 3072')
        if only_kvc:
            a(f'''
            s_lshr_b32 s66, s{W_PAR}, 6
            s_lshl_b32 s{S_TOK0}, s66, 7
            s_and_b32 s65, s{W_PAR}, 31
            s_bitcmp1_b32 s{W_PAR}, 5
            s_cselect_b32 s67, 0, 2
            ''')
        else:
            a(f'''
            s_cmp_eq_u32 s{W_TYPE}, 1
            s_cbranch_scc1 {P}_Q
            s_cmp_eq_u32 s{W_TYPE}, 2
            s_cbranch_scc1 {P}_A1
            s_lshr_b32 s66, s{W_PAR}, 6
            s_and_b32 s65, s{W_PAR}, 31
            s_bitcmp1_b32 s{W_PAR}, 5
            s_cselect_b32 s67, 0, 2
            s_branch {P}_GO
            {P}_Q:
            s_lshr_b32 s66, s{W_PAR}, 5
            s_and_b32 s65, s{W_PAR}, 31
            s_mov_b32 s67, 1
            s_branch {P}_GO
            {P}_A1:
            s_mul_i32 s66, s{W_PAR}, 6554
            s_lshr_b32 s66, s66, 16
            s_mul_i32 s69, s66, 10
            s_sub_u32 s65, s{W_PAR}, s69
            s_mov_b32 s67, 3
            {P}_GO:
            s_lshl_b32 s{S_TOK0}, s66, 8
            ''')
        a(f'''
        s_mul_i32 s{S_COL}, s65, 384
        s_mov_b32 s{S_WSTRIDE}, 12288
        s_mov_b32 s36, s{P_WV}
        s_mov_b32 s37, s{P_WV+1}
        s_mov_b32 s{S_DST}, 0
        s_cmp_eq_u32 s67, 0
        s_cselect_b32 s36, s{P_WK}, s36
        s_cselect_b32 s37, s{P_WK+1}, s37
        s_cselect_b32 s{S_DST}, {WS_KX}, s{S_DST}
        s_cmp_eq_u32 s67, 1
        s_cselect_b32 s36, s{P_WQ}, s36
        s_cselect_b32 s37, s{P_WQ+1}, s37
        s_cselect_b32 s{S_DST}, {WS_QX}, s{S_DST}
        s_mov_b32 s38, {640*6144*2}
        s_mov_b32 s39, 0x20000
        ''')
        if not only_kvc:
            a(f'''
            s_cmp_eq_u32 s67, 3
            s_cbranch_scc0 {P}_NOTA
            s_mov_b32 s{S_WSTRIDE}, 3840
            s_mov_b32 s36, s{P_AWQKV}
            s_mov_b32 s37, s{P_AWQKV+1}
            s_mov_b32 s38, {640*1920*2}
            s_mov_b32 s32, s{P_AX}
            s_mov_b32 s33, s{P_AX+1}
            s_mov_b32 s{S_DST}, {WS_QA}
            {P}_NOTA:
            ''')
        proj_item_setup(a,TB)
        a(f'''
        s_lshr_b32 s{S_T2}, s{S_TOK0}, 5
        s_mul_i32 s{S_T3}, s{S_WAVE}, {TB}
        s_add_u32 s{S_T2}, s{S_T2}, s{S_T3}
        s_mul_i32 s68, s65, {12*64}
        s_add_u32 s68, s68, s{S_T2}
        s_lshl_b32 s68, s68, 10
        s_add_u32 s{S_D0}, s68, s{S_DST}
        s_add_u32 s{S_D1}, s{S_D0}, 1024
        s_mul_i32 s68, s65, {40*64}
        s_add_u32 s68, s68, s{S_T2}
        s_lshl_b32 s68, s68, 10
        s_add_u32 s{S_C0}, s68, {WS_CX}
        s_add_u32 s{S_C1}, s{S_C0}, 1024
        s_mul_i32 s68, s65, 192
        s_mul_i32 s69, s{S_WAVE}, 48
        s_add_u32 s68, s68, s69
        s_mul_i32 s{S_WO}, s68, 1280
        ''')
        gemm.DMAF=''
        proj_main(a,TB,6)
        a(f's_cmp_eq_u32 s67, 2\ns_cbranch_scc1 {P}_VC')
        if not only_kvc: a(f's_cmp_eq_u32 s67, 3\ns_cbranch_scc1 {P}_A1E')
        store_epilogue(a,TB,6,SRD_WS,flags=ST)
        def sig_kvc():
            if only_kvc:
                LH=a.lab('H0')
                a('s_waitcnt vmcnt(0)\ns_barrier')
                a(f's_cmp_eq_u32 s66, 0\ns_cbranch_scc0 {LH}\ns_cmp_eq_u32 s48, 0\ns_cbranch_scc0 {LH}\ns_mov_b32 s95, {D_H0}\nv_mov_b32 v1, 1\ns_mov_b64 exec, 1\nbuffer_atomic_add v1, off, {SRD_D}, s95\ns_mov_b64 exec, -1\n{LH}:')
                signal(a,D_KVC)
            else:
                signal(a,'s68')
        a(f'''
        s_lshl_b32 s68, s66, 2
        s_mov_b32 s69, {D_QD}
        s_cmp_eq_u32 s67, 0
        s_cselect_b32 s69, {D_KVC}, s69
        s_add_u32 s68, s68, s69
        ''')
        sig_kvc()
        a(f's_branch {P}_DONE\n{P}_VC:')
        a(f'''
        v_lshrrev_b32 v{V_T}, 2, v{V_LANE}
        v_mul_u32_u24 v{V_T}, 1280, v{V_T}
        v_and_b32 v{V_WG2}, 3, v{V_LANE}
        v_lshlrev_b32 v{V_WG2}, 4, v{V_WG2}
        v_add_u32 v{V_WG2}, v{V_WG2}, v{V_T}
        v_bfe_u32 v{V_STC}, v{V_LANE}, 4, 1
        v_lshlrev_b32 v{V_STC}, 16, v{V_STC}
        v_and_b32 v{V_T}, 15, v{V_LANE}
        v_lshl_add_u32 v{V_STC}, v{V_T}, 5, v{V_STC}
        v_lshrrev_b32 v{V_T}, 5, v{V_LANE}
        v_lshl_add_u32 v{V_STC}, v{V_T}, 4, v{V_STC}
        ''')
        vc_stage2(a,TB,flags=ST)
        a(f's_lshl_b32 s68, s66, 2\ns_add_u32 s68, s68, {D_KVC}')
        sig_kvc()
        if not only_kvc:
            a(f's_branch {P}_DONE\n{P}_A1E:')
            a(f's_mul_i32 s79, s65, 6')
            parta.phi_store_epilogue(a,TB,6,79,flags=ST)
            signal(a,D_A1)
        a(f'{P}_DONE:')
    emit_proj(2,'WP',False)
    a('W_LOOP_T:\ns_branch W_LOOP_T1')
    a('W_P1_T:')
    emit_proj(1,'W1',True)
    a('W_LOOP_T1:\ns_branch W_LOOP_T2')
    a('W_A2_T:')
    wait_ge(a,D_A1,80)
    a(f's_mov_b32 s{parta.K_I}, s{W_PAR}')
    parta.STORE_FLAGS=ST
    parta.a2_item(a,P_AWO,ldf='sc1')
    signal(a,D_A2)
    a('W_LOOP_T2:\ns_branch W_LOOP_T3')
    a('W_AS_T:')
    wait_ge(a,D_A2,20)
    a(f's_mov_b32 s49, s{W_PAR}')
    parta.ascale_item(a,49,ldf='sc1')
    signal(a,D_AS)
    a('W_LOOP_T3:\ns_branch W_LOOP_T4')
    a('W_A3_T:')
    wait_ge(a,D_AS,64)
    gemm_lane_setup(a,TB)
    srd(a,32,P_WS,WS_SIZE)
    srd(a,36,P_WS,WS_SIZE)
    srd(a,44,P_OUT,2048*1280*2)
    a(f"""
    s_mov_b32 s68, s{W_PAR}
    s_lshr_b32 s66, s68, 2
    s_and_b32 s65, s68, 3
    s_lshl_b32 s{S_TOK0}, s66, 8
    s_mul_i32 s{S_COL}, s65, 320
    s_add_u32 s{S_COL}, s{S_COL}, {WS_M}
    s_mov_b32 s{S_WSTRIDE}, 1280
    """)
    proj_item_setup(a,TB)
    a(f"""
    s_add_u32 s{S_XBASE}, s{S_XBASE}, {WS_PQ}
    s_mul_i32 s{S_T2}, s{S_WAVE}, {32*TB}
    s_add_u32 s{S_T2}, s{S_T2}, s{S_TOK0}
    s_mul_i32 s{S_D0}, s{S_T2}, 2560
    s_mul_i32 s{S_T3}, s65, 320
    s_add_u32 s{S_D0}, s{S_D0}, s{S_T3}
    s_add_u32 s{S_D1}, s{S_D0}, {32*2560}
    v_and_b32 v{V_T}, 31, v{V_LANE}
    v_mul_u32_u24 v{V_T2}, 2560, v{V_T}
    v_lshrrev_b32 v{V_T}, 5, v{V_LANE}
    v_lshl_add_u32 v{V_T2}, v{V_T}, 4, v{V_T2}
    """)
    gemm.DMAF='sc1'
    proj_main(a,TB,5)
    gemm.DMAF=''
    parta.out_epilogue(a,TB,5,SRD_O,V_T2)
    a('W_LOOP_T4:\ns_branch W_LOOP_T5')
    a('W_FIN_T:')
    a(f's_lshr_b32 s49, s{W_PAR}, 2\ns_and_b32 s50, s{W_PAR}, 3')
    wait_ge(a,D_START,128)
    a(f's_lshr_b32 s68, s49, 3\ns_lshl_b32 s68, s68, 2\ns_add_u32 s68, s68, {D_QD}')
    wait_ge(a,'s68',32)
    def prog_wait(thr_expr, sleep):
        L=a.lab('FP'); X=a.lab('FX')
        a(f'''
        s_cmp_eq_u32 s48, 0
        s_cbranch_scc0 {X}
        v_and_b32 v2, 63, v0
        v_lshlrev_b32 v2, 8, v2
        s_mov_b32 s63, {rec.WS_PROG}
        s_add_u32 s62, s63, 16384
        {L}:
        buffer_load_dword v4, v2, s[40:43], s63 offen sc1
        buffer_load_dword v5, v2, s[40:43], s62 offen sc1
        s_waitcnt vmcnt(0)
        v_min_u32 v4, v4, v5
        v_cmp_gt_u32 vcc, {thr_expr}, v4
        s_cbranch_vccz {X}
        s_sleep {sleep}
        s_sub_u32 s{W_SPIN}, s{W_SPIN}, 1
        s_cbranch_scc0 {L}
        s_mov_b32 s{W_SPIN}, 0
        {X}:
        s_barrier
        ''')
    srd(a,44,P_OUT,2048*1280*2)
    LNW=a.lab('NW')
    a(f's_cmp_ge_u32 s49, {WARM_FROM}\ns_cbranch_scc0 {LNW}')
    a(f's_sub_u32 s61, s49, {WARM_AHEAD}')
    prog_wait('s61',FSLEEP)
    fin.fin_setup(a)
    fin.fin_warm(a,'sc1')
    a(f'{LNW}:')
    a(f's_add_u32 s61, s49, 1')
    prog_wait('s61',FSLEEP2)
    fin.fin_setup(a)
    fin.fin_item(a,ldf='sc1')
    a('W_LOOP_T5:\ns_branch W_LOOP\nK_END_T:\ns_waitcnt vmcnt(0)')
    wave_id(a); ts(a,26,vt=9,real=True)
    a('K_END:\ns_endpgm')

if __name__=='__main__':
    rec.FUSED=True; rec.KM_FLAGS='sc1'
    path=sys.argv[1] if len(sys.argv)>1 else 'test.s'
    from build import HDR
    a=Asm(); kernel(a)
    txt=HDR.rstrip('\n')+f'\n; @launch grid=(256,1,1) block=(256,1,1) lds={LDS_TOT}\n.amdgcn_target "amdgcn-amd-amdhsa--gfx950"\n.text\n.globl {KN}\n.p2align 8\n.type {KN},@function\n{KN}:\n'+a.text()+f'''.section .rodata,"a"
.p2align 6
.amdhsa_kernel {KN}
  .amdhsa_next_free_vgpr 512
  .amdhsa_next_free_sgpr 102
  .amdhsa_accum_offset 256
  .amdhsa_group_segment_fixed_size 0
  .amdhsa_kernarg_size 104
  .amdhsa_user_sgpr_count 2
  .amdhsa_user_sgpr_kernarg_segment_ptr 1
  .amdhsa_system_sgpr_workgroup_id_x 1
  .amdhsa_float_denorm_mode_32 3
.end_amdhsa_kernel
'''
    open(path,'w').write(txt)
```

```python
from common import *
SRD_WS='s[40:43]'; SRD_OUT='s[44:47]'
F_WAVE=48; F_S=49; F_NQ=50; F_T=51; F_T2=52; F_QO=53; F_KO=54; F_KMO=55; F_CO=56; F_UO=57; F_H=58; F_CSC=59; F_OUT=60
F_MASK=64
V_LANE=1; V_QL=2; V_KL=3; V_KML=4; V_CL=5; V_UL=6; V_OL=7; V_LW=8; V_T0=9; V_T1=10; V_MX=11; V_MX2=12; V_SUM=13; V_NINF=14
V_SX=16
V_SM=32
V_P=48
V_C=64
V_U=104
V_ACC=128
V_TMP=208
def qa(set_,b): return set_*96+b*4
def ka(set_,b): return set_*96+48+b*4
def kma(b): return 192+b*4
LDS_FIN=81920

def fin_setup(a, masks=True):
    a(f'''
    v_and_b32 v{V_LANE}, 63, v0
    v_lshrrev_b32 v{V_T0}, 6, v0
    s_nop 0
    v_readfirstlane_b32 s{F_WAVE}, v{V_T0}
    v_and_b32 v{V_T0}, 31, v{V_LANE}              ; t / j' / n
    v_lshrrev_b32 v{V_T1}, 5, v{V_LANE}           ; half
    v_lshlrev_b32 v{V_QL}, 5, v{V_T0}
    v_lshl_add_u32 v{V_QL}, v{V_T1}, 4, v{V_QL}
    v_and_b32 v{V_KL}, 0x13, v{V_T0}
    v_and_b32 v{V_MX}, 4, v{V_T0}
    v_lshl_add_u32 v{V_KL}, v{V_MX}, 1, v{V_KL}
    v_and_b32 v{V_MX}, 8, v{V_T0}
    v_lshrrev_b32 v{V_MX}, 1, v{V_MX}
    v_add_u32 v{V_KL}, v{V_KL}, v{V_MX}
    v_lshlrev_b32 v{V_KL}, 5, v{V_KL}
    v_lshl_add_u32 v{V_KL}, v{V_T1}, 4, v{V_KL}
    v_lshrrev_b32 v{V_KML}, 3, v{V_T0}
    v_mul_u32_u24 v{V_KML}, {12*16384}, v{V_KML}
    v_and_b32 v{V_MX}, 7, v{V_T0}
    v_lshl_add_u32 v{V_KML}, v{V_MX}, 5, v{V_KML}
    v_lshl_add_u32 v{V_KML}, v{V_T1}, 4, v{V_KML}
    v_lshrrev_b32 v{V_CL}, 4, v{V_T0}
    v_lshlrev_b32 v{V_UL}, 14, v{V_CL}
    v_lshlrev_b32 v{V_CL}, 16, v{V_CL}
    v_and_b32 v{V_MX}, 15, v{V_T0}
    v_lshl_add_u32 v{V_CL}, v{V_MX}, 5, v{V_CL}
    v_lshl_add_u32 v{V_CL}, v{V_T1}, 4, v{V_CL}
    v_lshl_add_u32 v{V_UL}, v{V_MX}, 4, v{V_UL}
    v_lshl_add_u32 v{V_UL}, v{V_T1}, 3, v{V_UL}
    v_mul_u32_u24 v{V_OL}, 2560, v{V_T0}
    v_lshl_add_u32 v{V_OL}, v{V_T1}, 4, v{V_OL}
    v_lshlrev_b32 v{V_LW}, 4, v{V_LANE}
    v_mov_b32 v{V_NINF}, 0xff800000
    v_mov_b32 v{V_P+10}, 0
    v_mov_b32 v{V_P+11}, 0
    s_mov_b32 s{F_CSC}, 0x3dd53b95
    ''')
    for k in range(5): a(f'v_mov_b32 v{V_U+4*k+2}, 0\nv_mov_b32 v{V_U+4*k+3}, 0')
    for r in (range(16) if masks else ()):
        q,i=divmod(r,4)
        def sig(x): return (x&0x13)|((x&4)<<1)|((x&8)>>1)
        t0=sig(8*q+i); t1=sig(8*q+4+i)
        a(f'''
        v_mov_b32 v{V_MX}, {t0}
        v_mov_b32 v{V_MX2}, {t1}
        v_cmp_eq_u32 vcc, 1, v{V_T1}
        s_nop 1
        v_cndmask_b32 v{V_MX}, v{V_MX}, v{V_MX2}, vcc
        v_cmp_le_u32 vcc, v{V_MX}, v{V_T0}
        s_mov_b64 s[{F_MASK+2*r}:{F_MASK+2*r+1}], vcc
        ''')

def qk_loads(set_, ldf):
    out=[]
    for b in range(12):
        out.append([f's_add_u32 s{F_T}, s{F_QO}, {b*65536}', f'buffer_load_dwordx4 a[{qa(set_,b)}:{qa(set_,b)+3}], v{V_QL}, {SRD_WS}, s{F_T} offen {ldf}'])
        out.append([f's_add_u32 s{F_T}, s{F_KO}, {b*65536}', f'buffer_load_dwordx4 a[{ka(set_,b)}:{ka(set_,b)+3}], v{V_KL}, {SRD_WS}, s{F_T} offen {ldf}'])
    return out
def km_loads(ldf):
    return [[f's_add_u32 s{F_T}, s{F_KMO}, {b*16384}', f'buffer_load_dwordx4 a[{kma(b)}:{kma(b)+3}], v{V_KML}, {SRD_WS}, s{F_T} offen {ldf}'] for b in range(12)]
def cu_loads(ldf):
    out=[]
    for nb in range(5):
        out.append([f's_add_u32 s{F_T}, s{F_CO}, {2*nb*65536}', f'buffer_load_dwordx4 v[{V_C+8*nb}:{V_C+8*nb+3}], v{V_CL}, {SRD_WS}, s{F_T} offen {ldf}'])
        out.append([f'buffer_load_dwordx4 v[{V_C+8*nb+4}:{V_C+8*nb+7}], v{V_CL}, {SRD_WS}, s{F_T} offen offset:512 {ldf}'])
        out.append([f's_add_u32 s{F_T}, s{F_UO}, {2*nb*16384}', f'buffer_load_dwordx2 v[{V_U+4*nb}:{V_U+4*nb+1}], v{V_UL}, {SRD_WS}, s{F_T} offen {ldf}'])
    return out

def fin_offsets(a):
    a(f'''
    s_lshl_b32 s{F_H}, s{F_WAVE}, 3
    s_mul_i32 s{F_T}, s{F_H}, {12*64}
    s_add_u32 s{F_T}, s{F_T}, s{F_S}
    s_lshl_b32 s{F_T2}, s{F_T}, 10
    s_add_u32 s{F_QO}, s{F_T2}, {WS_QX}
    s_add_u32 s{F_KO}, s{F_T2}, {WS_KX}
    s_lshl_b32 s{F_T2}, s{F_T}, 8
    s_add_u32 s{F_KMO}, s{F_T2}, {WS_KM}
    s_mul_i32 s{F_T}, s{F_H}, 40
    s_mul_i32 s{F_T2}, s{F_NQ}, 10
    s_add_u32 s{F_T}, s{F_T}, s{F_T2}
    s_lshl_b32 s{F_T}, s{F_T}, 6
    s_add_u32 s{F_T}, s{F_T}, s{F_S}
    s_lshl_b32 s{F_T2}, s{F_T}, 10
    s_add_u32 s{F_CO}, s{F_T2}, {WS_CX}
    s_lshl_b32 s{F_T2}, s{F_T}, 8
    s_add_u32 s{F_UO}, s{F_T2}, {WS_UM}
    ''')
def fin_warm(a, ldf):
    fin_offsets(a)
    L=a.lab('FW')
    a(f's_mov_b32 s{F_H}, 0\n{L}:')
    for g in qk_loads(0,ldf):
        for x in g: a(x)
    for nb in range(5):
        a(f's_add_u32 s{F_T}, s{F_CO}, {2*nb*65536}')
        a(f'buffer_load_dwordx4 v[{V_C+8*nb}:{V_C+8*nb+3}], v{V_CL}, {SRD_WS}, s{F_T} offen {ldf}')
        a(f'buffer_load_dwordx4 v[{V_C+8*nb+4}:{V_C+8*nb+7}], v{V_CL}, {SRD_WS}, s{F_T} offen offset:512 {ldf}')
    a(f'''
    s_add_u32 s{F_QO}, s{F_QO}, {12*65536}
    s_add_u32 s{F_KO}, s{F_KO}, {12*65536}
    s_add_u32 s{F_CO}, s{F_CO}, {40*65536}
    s_waitcnt vmcnt(20)
    s_add_u32 s{F_H}, s{F_H}, 1
    s_cmp_lt_u32 s{F_H}, 8
    s_cbranch_scc1 {L}
    s_waitcnt vmcnt(0)
    ''')
def fin_reduce(a):
    a('s_nop 7\ns_nop 7')
    a(f's_mul_i32 s{F_T}, s{F_WAVE}, 20480\nv_add_u32 v{V_T0}, s{F_T}, v{V_LW}')
    for nb in range(5):
        for q in range(4):
            a(f'ds_write_b128 v{V_T0}, v[{V_ACC+16*nb+4*q}:{V_ACC+16*nb+4*q+3}] offset:{(nb*4+q)*1024}')
    a('s_waitcnt lgkmcnt(0)\ns_barrier')
    def reduce_block(nbreg_expr, off):
        pass
    a(f'''
    s_mul_i32 s{F_OUT}, s{F_S}, {32*2560}
    s_mul_i32 s{F_T}, s{F_NQ}, 320
    s_add_u32 s{F_OUT}, s{F_OUT}, s{F_T}
    s_add_u32 s{F_OUT}, s{F_OUT}, 1280
    s_lshl_b32 s{F_T}, s{F_WAVE}, 12
    v_add_u32 v{V_T0}, s{F_T}, v{V_LW}
    s_lshl_b32 s{F_T2}, s{F_WAVE}, 6
    s_add_u32 s{F_T2}, s{F_T2}, s{F_OUT}
    ''')
    def do_block():
        R=V_TMP
        for w in range(3):
            for q in range(4):
                a(f'ds_read_b128 v[{R+16*w+4*q}:{R+16*w+4*q+3}], v{V_T0} offset:{w*20480+q*1024}')
        for q in range(4):
            a(f'ds_read_b128 v[{V_SX+4*q}:{V_SX+4*q+3}], v{V_T0} offset:{3*20480+q*1024}')
        a('s_waitcnt lgkmcnt(0)')
        for k in range(0,16,2):
            a(f'v_pk_add_f32 v[{R+k}:{R+k+1}], v[{R+k}:{R+k+1}], v[{R+16+k}:{R+16+k+1}]')
            a(f'v_pk_add_f32 v[{V_SX+k}:{V_SX+k+1}], v[{V_SX+k}:{V_SX+k+1}], v[{R+32+k}:{R+32+k+1}]')
        for k in range(0,16,2): a(f'v_pk_add_f32 v[{R+k}:{R+k+1}], v[{R+k}:{R+k+1}], v[{V_SX+k}:{V_SX+k+1}]')
        d=V_P
        for k in range(8): a(f'v_cvt_pk_bf16_f32 v{d+k}, v{R+2*k}, v{R+2*k+1}')
        a('s_nop 1')
        a(f'v_permlane32_swap_b32 v{d}, v{d+2}\nv_permlane32_swap_b32 v{d+1}, v{d+3}\nv_permlane32_swap_b32 v{d+4}, v{d+6}\nv_permlane32_swap_b32 v{d+5}, v{d+7}')
        a(f'buffer_store_dwordx4 v[{d}:{d+3}], v{V_OL}, {SRD_OUT}, s{F_T2} offen')
        a(f'buffer_store_dwordx4 v[{d+4}:{d+7}], v{V_OL}, {SRD_OUT}, s{F_T2} offen offset:32')
    do_block()
    L=a.lab('FB')
    a(f'''
    s_cmp_eq_u32 s{F_WAVE}, 0
    s_cbranch_scc0 {L}
    v_add_u32 v{V_T0}, 16384, v{V_T0}
    s_add_u32 s{F_T2}, s{F_OUT}, 256
    s_nop 1
    ''')
    do_block()
    a(f'{L}:')

FTS=None
def fin_item(a, ldf='', lqk=''):
    fin_offsets(a)
    for g in qk_loads(0,ldf)+km_loads(ldf):
        for x in g: a(x)
    a(f's_add_u32 s{F_QO}, s{F_QO}, {12*65536}\ns_add_u32 s{F_KO}, s{F_KO}, {12*65536}')
    for hh in range(8):
        cur=hh&1
        if FTS: FTS(2*hh)
        a('s_waitcnt vmcnt(0)')
        if FTS: FTS(2*hh+1)
        cu=cu_loads(ldf)
        nxt=[]
        if hh<7: nxt=qk_loads(cur^1,ldf)
        mm=[]
        for b in range(12):
            c='0' if b==0 else f'v[{V_SX}:{V_SX+15}]'
            mm.append(f'v_mfma_f32_32x32x16_bf16 v[{V_SX}:{V_SX+15}], a[{ka(cur,b)}:{ka(cur,b)+3}], a[{qa(cur,b)}:{qa(cur,b)+3}], {c}')
            c='0' if b==0 else f'v[{V_SM}:{V_SM+15}]'
            mm.append(f'v_mfma_f32_32x32x16_bf16 v[{V_SM}:{V_SM+15}], a[{kma(b)}:{kma(b)+3}], a[{qa(cur,b)}:{qa(cur,b)+3}], {c}')
        for x in interleave(mm,cu+nxt): a(x)
        nafter=len(nxt)
        if hh==3:
            pass
        if hh<7: a(f's_add_u32 s{F_QO}, s{F_QO}, {12*65536}\ns_add_u32 s{F_KO}, s{F_KO}, {12*65536}')
        a('s_nop 7\ns_nop 3')
        if hh==3:
            a(f's_add_u32 s{F_KMO}, s{F_KMO}, {4*12*16384}')
            for g in km_loads(ldf):
                for x in g: a(x)
            nafter+=12
        M=V_SM+4*(hh&3)
        X=V_SX
        for r in range(16): a(f'v_cndmask_b32 v{X+r}, v{V_NINF}, v{X+r}, s[{F_MASK+2*r}:{F_MASK+2*r+1}]')
        a(f'''
        v_max3_f32 v{V_MX}, v{X}, v{X+1}, v{X+2}
        v_max3_f32 v{V_MX2}, v{X+3}, v{X+4}, v{X+5}
        v_max3_f32 v{V_MX}, v{X+6}, v{X+7}, v{V_MX}
        v_max3_f32 v{V_MX2}, v{X+8}, v{X+9}, v{V_MX2}
        v_max3_f32 v{V_MX}, v{X+10}, v{X+11}, v{V_MX}
        v_max3_f32 v{V_MX2}, v{X+12}, v{X+13}, v{V_MX2}
        v_max3_f32 v{V_MX}, v{X+14}, v{X+15}, v{V_MX}
        v_max3_f32 v{V_MX2}, v{M}, v{M+1}, v{V_MX2}
        v_max3_f32 v{V_MX}, v{M+2}, v{M+3}, v{V_MX}
        v_max_f32 v{V_MX}, v{V_MX}, v{V_MX2}
        v_mov_b32 v{V_MX2}, v{V_MX}
        s_nop 1
        v_permlane32_swap_b32 v{V_MX}, v{V_MX2}
        s_nop 0
        v_max_f32 v{V_MX}, v{V_MX}, v{V_MX2}
        v_mul_f32 v{V_MX}, s{F_CSC}, v{V_MX}
        ''')
        vals=[X+r for r in range(16)]+[M+i for i in range(4)]
        for v in vals: a(f'v_fma_f32 v{v}, v{v}, s{F_CSC}, -v{V_MX}')
        for v in vals: a(f'v_exp_f32 v{v}, v{v}')
        a('s_nop 0')
        a(f'v_add_f32 v{V_SUM}, v{vals[0]}, v{vals[1]}\nv_add_f32 v{V_MX2}, v{vals[2]}, v{vals[3]}')
        for k in range(4,20,2): a(f'v_add_f32 v{V_SUM}, v{V_SUM}, v{vals[k]}\nv_add_f32 v{V_MX2}, v{V_MX2}, v{vals[k+1]}')
        a(f'''
        v_add_f32 v{V_SUM}, v{V_SUM}, v{V_MX2}
        v_mov_b32 v{V_MX2}, v{V_SUM}
        s_nop 1
        v_permlane32_swap_b32 v{V_SUM}, v{V_MX2}
        s_nop 0
        v_add_f32 v{V_SUM}, v{V_SUM}, v{V_MX2}
        v_rcp_f32 v{V_SUM}, v{V_SUM}
        s_nop 0
        ''')
        for v in vals: a(f'v_mul_f32 v{v}, v{v}, v{V_SUM}')
        for k in range(8): a(f'v_cvt_pk_bf16_f32 v{V_P+k}, v{X+2*k}, v{X+2*k+1}')
        a(f'v_cvt_pk_bf16_f32 v{V_P+8}, v{M}, v{M+1}\nv_cvt_pk_bf16_f32 v{V_P+9}, v{M+2}, v{M+3}')
        a(f's_waitcnt vmcnt({nafter})')
        for nb in range(5):
            d=V_ACC+16*nb
            c='0' if hh==0 else f'v[{d}:{d+15}]'
            a(f'v_mfma_f32_32x32x16_bf16 v[{d}:{d+15}], v[{V_C+8*nb}:{V_C+8*nb+3}], v[{V_P}:{V_P+3}], {c}')
        for nb in range(5):
            d=V_ACC+16*nb
            a(f'v_mfma_f32_32x32x16_bf16 v[{d}:{d+15}], v[{V_C+8*nb+4}:{V_C+8*nb+7}], v[{V_P+4}:{V_P+7}], v[{d}:{d+15}]')
        for nb in range(5):
            d=V_ACC+16*nb
            a(f'v_mfma_f32_32x32x16_bf16 v[{d}:{d+15}], v[{V_U+4*nb}:{V_U+4*nb+3}], v[{V_P+8}:{V_P+11}], v[{d}:{d+15}]')
        a(f's_add_u32 s{F_CO}, s{F_CO}, {40*65536}\ns_add_u32 s{F_UO}, s{F_UO}, {40*16384}')
    if FTS: FTS(16)
    fin_reduce(a)


V_PL=15
F_NQE=61; F_PW=62
def fp_item(a, wait_progress, ldf='sc1'):
    def offs():
        a(f"""
        s_lshl_b32 s{F_H}, s{F_NQ}, 3
        s_lshl_b32 s{F_T}, s{F_WAVE}, 1
        s_add_u32 s{F_H}, s{F_H}, s{F_T}
        s_mul_i32 s{F_T}, s{F_H}, {12*64}
        s_add_u32 s{F_T}, s{F_T}, s{F_S}
        s_lshl_b32 s{F_T2}, s{F_T}, 10
        s_add_u32 s{F_QO}, s{F_T2}, {WS_QX}
        s_add_u32 s{F_KO}, s{F_T2}, {WS_KX}
        """)
    LHQ=a.lab('HQ')
    a(f'{LHQ}:')
    offs()
    for g in qk_loads(0,ldf):
        for x in g: a(x)
    a(f's_add_u32 s{F_QO}, s{F_QO}, {12*65536}\ns_add_u32 s{F_KO}, s{F_KO}, {12*65536}')
    for g in qk_loads(1,ldf):
        for x in g: a(x)
    SX=[V_SX, 64]
    a('s_waitcnt vmcnt(24)')
    for b in range(12):
        c='0' if b==0 else f'v[{SX[0]}:{SX[0]+15}]'
        a(f'v_mfma_f32_32x32x16_bf16 v[{SX[0]}:{SX[0]+15}], a[{ka(0,b)}:{ka(0,b)+3}], a[{qa(0,b)}:{qa(0,b)+3}], {c}')
    a('s_waitcnt vmcnt(0)')
    for b in range(12):
        c='0' if b==0 else f'v[{SX[1]}:{SX[1]+15}]'
        a(f'v_mfma_f32_32x32x16_bf16 v[{SX[1]}:{SX[1]+15}], a[{ka(1,b)}:{ka(1,b)+3}], a[{qa(1,b)}:{qa(1,b)+3}], {c}')
    LNW=a.lab('NWP')
    a(f's_cmp_eq_u32 s{F_PW}, 1\ns_cbranch_scc1 {LNW}')
    wait_progress()
    a(f's_mov_b32 s{F_PW}, 1\n{LNW}:')
    a(f"""
    v_and_b32 v{V_T0}, 31, v{V_LANE}
    v_lshrrev_b32 v{V_T1}, 5, v{V_LANE}
    v_lshlrev_b32 v{V_QL}, 5, v{V_T0}
    v_lshl_add_u32 v{V_QL}, v{V_T1}, 4, v{V_QL}
    v_lshrrev_b32 v{V_KML}, 3, v{V_T0}
    v_mul_u32_u24 v{V_KML}, {12*16384}, v{V_KML}
    v_and_b32 v{V_MX}, 7, v{V_T0}
    v_lshl_add_u32 v{V_KML}, v{V_MX}, 5, v{V_KML}
    v_lshl_add_u32 v{V_KML}, v{V_T1}, 4, v{V_KML}
    v_lshlrev_b32 v{V_PL}, 4, v{V_LANE}
    s_and_b32 s{F_T}, s{F_H}, 0xfc
    s_mul_i32 s{F_T}, s{F_T}, {12*64}
    s_add_u32 s{F_T}, s{F_T}, s{F_S}
    s_lshl_b32 s{F_T2}, s{F_T}, 8
    s_add_u32 s{F_KMO}, s{F_T2}, {WS_KM}
    """)
    for g in km_loads(ldf):
        for x in g: a(x)
    a(f"""
    s_lshl_b32 s{F_T}, s{F_S}, 5
    s_add_u32 s{F_T}, s{F_T}, s{F_H}
    s_mul_i32 s{F_CO}, s{F_T}, 3072
    s_add_u32 s{F_CO}, s{F_CO}, {WS_P}
    s_waitcnt vmcnt(0)
    """)
    SMs=[V_SM, 80]
    for k in range(2):
        for b in range(12):
            c='0' if b==0 else f'v[{SMs[k]}:{SMs[k]+15}]'
            a(f'v_mfma_f32_32x32x16_bf16 v[{SMs[k]}:{SMs[k]+15}], a[{kma(b)}:{kma(b)+3}], a[{qa(k,b)}:{qa(k,b)+3}], {c}')
    a('s_nop 7\ns_nop 3')
    for k in range(2):
        X=SX[k]
        LA=a.lab('FA'); LB=a.lab('FB')
        Mt=96
        a(f's_bitcmp1_b32 s{F_WAVE}, 0\ns_cbranch_scc1 {LA}')
        for i in range(4): a(f'v_mov_b32 v{Mt+i}, v{SMs[k]+4*k+i}')
        a(f's_branch {LB}\n{LA}:')
        for i in range(4): a(f'v_mov_b32 v{Mt+i}, v{SMs[k]+4*(2+k)+i}')
        a(f'{LB}:')
        M=Mt
        for r in range(16): a(f'v_cndmask_b32 v{X+r}, v{V_NINF}, v{X+r}, s[{F_MASK+2*r}:{F_MASK+2*r+1}]')
        a(f"""
        v_max3_f32 v{V_MX}, v{X}, v{X+1}, v{X+2}
        v_max3_f32 v{V_MX2}, v{X+3}, v{X+4}, v{X+5}
        v_max3_f32 v{V_MX}, v{X+6}, v{X+7}, v{V_MX}
        v_max3_f32 v{V_MX2}, v{X+8}, v{X+9}, v{V_MX2}
        v_max3_f32 v{V_MX}, v{X+10}, v{X+11}, v{V_MX}
        v_max3_f32 v{V_MX2}, v{X+12}, v{X+13}, v{V_MX2}
        v_max3_f32 v{V_MX}, v{X+14}, v{X+15}, v{V_MX}
        v_max3_f32 v{V_MX2}, v{M}, v{M+1}, v{V_MX2}
        v_max3_f32 v{V_MX}, v{M+2}, v{M+3}, v{V_MX}
        v_max_f32 v{V_MX}, v{V_MX}, v{V_MX2}
        v_mov_b32 v{V_MX2}, v{V_MX}
        s_nop 1
        v_permlane32_swap_b32 v{V_MX}, v{V_MX2}
        s_nop 0
        v_max_f32 v{V_MX}, v{V_MX}, v{V_MX2}
        v_mul_f32 v{V_MX}, s{F_CSC}, v{V_MX}
        """)
        vals=[X+r for r in range(16)]+[M+i for i in range(4)]
        for v in vals: a(f'v_fma_f32 v{v}, v{v}, s{F_CSC}, -v{V_MX}')
        for v in vals: a(f'v_exp_f32 v{v}, v{v}')
        a('s_nop 0')
        a(f'v_add_f32 v{V_SUM}, v{vals[0]}, v{vals[1]}\nv_add_f32 v{V_MX2}, v{vals[2]}, v{vals[3]}')
        for kk in range(4,20,2): a(f'v_add_f32 v{V_SUM}, v{V_SUM}, v{vals[kk]}\nv_add_f32 v{V_MX2}, v{V_MX2}, v{vals[kk+1]}')
        a(f"""
        v_add_f32 v{V_SUM}, v{V_SUM}, v{V_MX2}
        v_mov_b32 v{V_MX2}, v{V_SUM}
        s_nop 1
        v_permlane32_swap_b32 v{V_SUM}, v{V_MX2}
        s_nop 0
        v_add_f32 v{V_SUM}, v{V_SUM}, v{V_MX2}
        v_rcp_f32 v{V_SUM}, v{V_SUM}
        s_nop 0
        """)
        for v in vals: a(f'v_mul_f32 v{v}, v{v}, v{V_SUM}')
        P=100+12*k
        P=(P+3)//4*4
        for kk in range(8): a(f'v_cvt_pk_bf16_f32 v{P+kk}, v{X+2*kk}, v{X+2*kk+1}')
        a(f'v_cvt_pk_bf16_f32 v{P+8}, v{M}, v{M+1}\nv_cvt_pk_bf16_f32 v{P+9}, v{M+2}, v{M+3}')
        a(f'buffer_store_dwordx4 v[{P}:{P+3}], v{V_PL}, {SRD_WS}, s{F_CO} offen sc1')
        a(f'buffer_store_dwordx4 v[{P+4}:{P+7}], v{V_PL}, {SRD_WS}, s{F_CO} offen offset:1024 sc1')
        a(f'v_lshrrev_b32 v{V_T0}, 1, v{V_PL}')
        a(f'buffer_store_dwordx2 v[{P+8}:{P+9}], v{V_T0}, {SRD_WS}, s{F_CO} offen offset:2048 sc1')
        a(f's_add_u32 s{F_CO}, s{F_CO}, 3072')
    a(f's_add_u32 s{F_NQ}, s{F_NQ}, 1\ns_cmp_lt_u32 s{F_NQ}, s{F_NQE}\ns_cbranch_scc1 {LHQ}')

def fo_item(a, wait_fp, ldf='sc1'):
    fin_offsets(a)
    def creg(hh,nb,b):
        if hh<6: return f'a[{40*hh+8*nb+4*b}:{40*hh+8*nb+4*b+3}]'
        base={6:16,7:64}[hh]
        return f'v[{base+8*nb+4*b}:{base+8*nb+4*b+3}]'
    for hh in range(8):
        for nb in range(5):
            a(f's_add_u32 s{F_T}, s{F_CO}, {2*nb*65536}')
            a(f'buffer_load_dwordx4 {creg(hh,nb,0)}, v{V_CL}, {SRD_WS}, s{F_T} offen {ldf}')
            a(f'buffer_load_dwordx4 {creg(hh,nb,1)}, v{V_CL}, {SRD_WS}, s{F_T} offen offset:512 {ldf}')
        a(f's_add_u32 s{F_CO}, s{F_CO}, {40*65536}')
        if hh%4==3: a('s_waitcnt vmcnt(20)')
    wait_fp()
    a(f"""
    v_and_b32 v{V_LANE}, 63, v0
    v_lshlrev_b32 v{V_PL}, 4, v{V_LANE}
    v_lshrrev_b32 v{V_T1}, 1, v{V_PL}
    s_lshl_b32 s{F_T}, s{F_S}, 5
    s_lshl_b32 s{F_T2}, s{F_WAVE}, 3
    s_add_u32 s{F_T}, s{F_T}, s{F_T2}
    s_mul_i32 s{F_QO}, s{F_T}, 3072
    s_add_u32 s{F_QO}, s{F_QO}, {WS_P}
    """)
    PS=[104,116]; US=[208,228]
    for k in range(2):
        a(f'v_mov_b32 v{PS[k]+10}, 0\nv_mov_b32 v{PS[k]+11}, 0')
        for nb in range(5): a(f'v_mov_b32 v{US[k]+4*nb+2}, 0\nv_mov_b32 v{US[k]+4*nb+3}, 0')
    def pu_loads(k):
        a(f'buffer_load_dwordx4 v[{PS[k]}:{PS[k]+3}], v{V_PL}, {SRD_WS}, s{F_QO} offen {ldf}')
        a(f'buffer_load_dwordx4 v[{PS[k]+4}:{PS[k]+7}], v{V_PL}, {SRD_WS}, s{F_QO} offen offset:1024 {ldf}')
        a(f'buffer_load_dwordx2 v[{PS[k]+8}:{PS[k]+9}], v{V_T1}, {SRD_WS}, s{F_QO} offen offset:2048 {ldf}')
        for nb in range(5):
            a(f's_add_u32 s{F_T}, s{F_UO}, {2*nb*16384}\nbuffer_load_dwordx2 v[{US[k]+4*nb}:{US[k]+4*nb+1}], v{V_UL}, {SRD_WS}, s{F_T} offen {ldf}')
        a(f's_add_u32 s{F_QO}, s{F_QO}, 3072\ns_add_u32 s{F_UO}, s{F_UO}, {40*16384}')
    pu_loads(0); pu_loads(1)
    for hh in range(8):
        k=hh&1
        a('s_waitcnt vmcnt(8)' if hh<7 else 's_waitcnt vmcnt(0)')
        P=PS[k]; U=US[k]
        for nb in range(5):
            d=V_ACC+16*nb
            c='0' if hh==0 else f'v[{d}:{d+15}]'
            a(f'v_mfma_f32_32x32x16_bf16 v[{d}:{d+15}], {creg(hh,nb,0)}, v[{P}:{P+3}], {c}')
        for nb in range(5):
            d=V_ACC+16*nb
            a(f'v_mfma_f32_32x32x16_bf16 v[{d}:{d+15}], {creg(hh,nb,1)}, v[{P+4}:{P+7}], v[{d}:{d+15}]')
        for nb in range(5):
            d=V_ACC+16*nb
            a(f'v_mfma_f32_32x32x16_bf16 v[{d}:{d+15}], v[{U+4*nb}:{U+4*nb+3}], v[{P+8}:{P+11}], v[{d}:{d+15}]')
        if hh+2<8: pu_loads(k)
    fin_reduce(a)


def fpc_item(a, ldf='sc1'):
    fin_offsets(a)
    a(f"""
    v_lshlrev_b32 v{V_PL}, 4, v{V_LANE}
    s_lshl_b32 s{F_T}, s{F_S}, 5
    s_lshl_b32 s{F_T2}, s{F_WAVE}, 3
    s_add_u32 s{F_T}, s{F_T}, s{F_T2}
    s_mul_i32 s{F_CO}, s{F_T}, 3072
    s_add_u32 s{F_CO}, s{F_CO}, {WS_P}
    v_lshrrev_b32 v{V_OL}, 1, v{V_PL}
    """)
    def qreg(st,b): return (f'a[{qa(st,b)}:{qa(st,b)+3}]' if st<2 else f'v[{128+4*b}:{128+4*b+3}]')
    def kreg(st,b): return (f'a[{ka(st,b)}:{ka(st,b)+3}]' if st<2 else f'v[{176+4*b}:{176+4*b+3}]')
    def qk3(st):
        out=[]
        for b in range(12):
            out.append([f's_add_u32 s{F_T}, s{F_QO}, {b*65536}', f'buffer_load_dwordx4 {qreg(st,b)}, v{V_QL}, {SRD_WS}, s{F_T} offen {ldf}'])
            out.append([f's_add_u32 s{F_T}, s{F_KO}, {b*65536}', f'buffer_load_dwordx4 {kreg(st,b)}, v{V_KL}, {SRD_WS}, s{F_T} offen {ldf}'])
        out[-1].append(f's_add_u32 s{F_QO}, s{F_QO}, {12*65536}'); out[-1].append(f's_add_u32 s{F_KO}, s{F_KO}, {12*65536}')
        return out
    for g in km_loads(ldf)+qk3(0)+qk3(1):
        for x in g: a(x)
    seq=['km']*12+['qk0']*24+['qk1']*24
    for hh in range(8):
        cur=hh%3
        last=max(i for i,t in enumerate(seq) if t==f'qk{hh}')
        if hh==4: last=max(last,max(i for i,t in enumerate(seq) if t=='km2'))
        a(f's_waitcnt vmcnt({min(63,len(seq)-1-last)})')
        nxt=[]
        if hh+2<8:
            nxt=qk3((hh+2)%3); seq+= [f'qk{hh+2}']*24
        mm=[]
        for b in range(12):
            c='0' if b==0 else f'v[{V_SX}:{V_SX+15}]'
            mm.append(f'v_mfma_f32_32x32x16_bf16 v[{V_SX}:{V_SX+15}], {kreg(cur,b)}, {qreg(cur,b)}, {c}')
            c='0' if b==0 else f'v[{V_SM}:{V_SM+15}]'
            mm.append(f'v_mfma_f32_32x32x16_bf16 v[{V_SM}:{V_SM+15}], a[{kma(b)}:{kma(b)+3}], {qreg(cur,b)}, {c}')
        for x in interleave(mm,nxt): a(x)
        a('s_nop 7\ns_nop 3')
        if hh==3:
            a(f's_add_u32 s{F_KMO}, s{F_KMO}, {4*12*16384}')
            for g in km_loads(ldf):
                for x in g: a(x)
            seq+=['km2']*12
        M=V_SM+4*(hh&3); X=V_SX
        for r in range(16): a(f'v_cndmask_b32 v{X+r}, v{V_NINF}, v{X+r}, s[{F_MASK+2*r}:{F_MASK+2*r+1}]')
        a(f"""
        v_max3_f32 v{V_MX}, v{X}, v{X+1}, v{X+2}
        v_max3_f32 v{V_MX2}, v{X+3}, v{X+4}, v{X+5}
        v_max3_f32 v{V_MX}, v{X+6}, v{X+7}, v{V_MX}
        v_max3_f32 v{V_MX2}, v{X+8}, v{X+9}, v{V_MX2}
        v_max3_f32 v{V_MX}, v{X+10}, v{X+11}, v{V_MX}
        v_max3_f32 v{V_MX2}, v{X+12}, v{X+13}, v{V_MX2}
        v_max3_f32 v{V_MX}, v{X+14}, v{X+15}, v{V_MX}
        v_max3_f32 v{V_MX2}, v{M}, v{M+1}, v{V_MX2}
        v_max3_f32 v{V_MX}, v{M+2}, v{M+3}, v{V_MX}
        v_max_f32 v{V_MX}, v{V_MX}, v{V_MX2}
        v_mov_b32 v{V_MX2}, v{V_MX}
        s_nop 1
        v_permlane32_swap_b32 v{V_MX}, v{V_MX2}
        s_nop 0
        v_max_f32 v{V_MX}, v{V_MX}, v{V_MX2}
        v_mul_f32 v{V_MX}, s{F_CSC}, v{V_MX}
        """)
        vals=[X+r for r in range(16)]+[M+i for i in range(4)]
        for v in vals: a(f'v_fma_f32 v{v}, v{v}, s{F_CSC}, -v{V_MX}')
        for v in vals: a(f'v_exp_f32 v{v}, v{v}')
        a('s_nop 0')
        a(f'v_add_f32 v{V_SUM}, v{vals[0]}, v{vals[1]}\nv_add_f32 v{V_MX2}, v{vals[2]}, v{vals[3]}')
        for kk in range(4,20,2): a(f'v_add_f32 v{V_SUM}, v{V_SUM}, v{vals[kk]}\nv_add_f32 v{V_MX2}, v{V_MX2}, v{vals[kk+1]}')
        a(f"""
        v_add_f32 v{V_SUM}, v{V_SUM}, v{V_MX2}
        v_mov_b32 v{V_MX2}, v{V_SUM}
        s_nop 1
        v_permlane32_swap_b32 v{V_SUM}, v{V_MX2}
        s_nop 0
        v_add_f32 v{V_SUM}, v{V_SUM}, v{V_MX2}
        v_rcp_f32 v{V_SUM}, v{V_SUM}
        s_nop 0
        """)
        for v in vals: a(f'v_mul_f32 v{v}, v{v}, v{V_SUM}')
        P=64+12*(hh&1)
        P=64 if (hh&1)==0 else 76
        for kk in range(8): a(f'v_cvt_pk_bf16_f32 v{P+kk}, v{X+2*kk}, v{X+2*kk+1}')
        a(f'v_cvt_pk_bf16_f32 v{P+8}, v{M}, v{M+1}\nv_cvt_pk_bf16_f32 v{P+9}, v{M+2}, v{M+3}')
        a(f'buffer_store_dwordx4 v[{P}:{P+3}], v{V_PL}, {SRD_WS}, s{F_CO} offen sc1')
        a(f'buffer_store_dwordx4 v[{P+4}:{P+7}], v{V_PL}, {SRD_WS}, s{F_CO} offen offset:1024 sc1')
        a(f'buffer_store_dwordx2 v[{P+8}:{P+9}], v{V_OL}, {SRD_WS}, s{F_CO} offen offset:2048 sc1')
        a(f's_add_u32 s{F_CO}, s{F_CO}, 3072')
        seq+=['st']*3
```

```python
from common import *
V_TID=0; V_LANE=1
V_XA=[2,3,4,5]
V_W0=6; V_W1=7
V_P0=8; V_P1=9
V_XG=[10,11]
V_WG=12
V_ST=13
V_T=14; V_T2=15
V_STC=12
V_PK=16
ACC=64
XB=[0,32768]; WB=[65536,65536+24576]
WSZ=24576; NWB=3
LDS_GEMM=65536+NWB*24576
V_WBASE=31
S_WCUR=81; S_WWR=82; S_WWN=83; V_WNX=30
S_WAVE=48
S_XBASE=49; S_XLDS=50; S_WST=51; S_WLDS=52; S_WSTRIDE=53; S_WSTEP=54; S_T=55; S_D0=56; S_D1=57
S_CNT=80; S_TOK0=58; S_COL=59; S_DST=60; S_NC16=61; S_MODE=62; S_T2=63; S_T3=64
SRD_X='s[32:35]'; SRD_W='s[36:39]'; SRD_WS='s[40:43]'; SRD_O='s[44:47]'

def gemm_lane_setup(a, TB):
    a(f'''
    v_and_b32 v{V_LANE}, 63, v{V_TID}
    v_lshrrev_b32 v{V_T}, 6, v{V_TID}
    s_nop 0
    v_readfirstlane_b32 s{S_WAVE}, v{V_T}
    ''')
    a(f'''
    v_and_b32 v{V_T}, 31, v{V_LANE}              ; t'
    v_and_b32 v{V_PK}, 0x13, v{V_T}
    v_and_b32 v{V_PK+1}, 4, v{V_T}
    v_lshl_add_u32 v{V_PK}, v{V_PK+1}, 1, v{V_PK}
    v_and_b32 v{V_PK+1}, 8, v{V_T}
    v_lshrrev_b32 v{V_PK+1}, 1, v{V_PK+1}
    v_add_u32 v{V_T}, v{V_PK}, v{V_PK+1}
    v_lshrrev_b32 v{V_T2}, 5, v{V_LANE}          ; half
    v_lshrrev_b32 v{V_PK}, 1, v{V_T}
    v_and_b32 v{V_PK}, 7, v{V_PK}                ; f=(t>>1)&7
    s_mul_i32 s{S_T}, s{S_WAVE}, {32*TB*128}
    v_lshlrev_b32 v{V_PK+1}, 7, v{V_T}           ; t*128
    v_add_u32 v{V_PK+1}, s{S_T}, v{V_PK+1}       ; row*128
    ''')
    for ks in range(4):
        a(f'''
        v_add_u32 v{V_PK+2}, {2*ks}, v{V_T2}
        v_xor_b32 v{V_PK+2}, v{V_PK+2}, v{V_PK}
        v_lshlrev_b32 v{V_PK+2}, 4, v{V_PK+2}
        v_add_u32 v{V_XA[ks]}, v{V_PK+1}, v{V_PK+2}
        ''')
    a(f'''
    v_lshlrev_b32 v{V_ST}, 5, v{V_T}
    v_lshlrev_b32 v{V_PK+2}, 4, v{V_T2}
    v_add_u32 v{V_ST}, v{V_ST}, v{V_PK+2}
    ''')
    a(f'''
    v_and_b32 v{V_PK}, 15, v{V_LANE}             ; i
    v_lshrrev_b32 v{V_PK+1}, 2, v{V_PK}          ; i>>2
    v_and_b32 v{V_PK+2}, 3, v{V_PK}              ; c=i&3
    v_lshrrev_b32 v{V_PK+6}, 1, v{V_PK+2}
    v_and_b32 v{V_PK+2}, 1, v{V_PK+2}
    v_lshl_add_u32 v{V_PK+2}, v{V_PK+2}, 1, v{V_PK+6}   ; sigma_q(c) = ((c&1)<<1)|(c>>1)
    v_lshrrev_b32 v{V_PK+3}, 4, v{V_LANE}        ; gidx
    v_and_b32 v{V_PK+4}, 1, v{V_PK+3}            ; sub
    v_lshlrev_b32 v{V_PK+4}, 5, v{V_PK+4}        ; sub*32
    v_lshlrev_b32 v{V_PK+2}, 3, v{V_PK+2}        ; (i&3)*8
    v_add_u32 v{V_PK+4}, v{V_PK+4}, v{V_PK+2}
    v_lshlrev_b32 v{V_PK+5}, 3, v{V_T2}          ; 8*half
    v_add_u32 v{V_PK+5}, v{V_PK+5}, v{V_PK+1}
    v_lshlrev_b32 v{V_PK+5}, 6, v{V_PK+5}
    v_add_u32 v{V_PK+5}, v{V_PK+5}, v{V_PK+4}
    v_add_u32 v{V_W0}, {WB[0]}, v{V_PK+5}
    v_add_u32 v{V_W1}, {WB[1]}, v{V_PK+5}
    v_and_b32 v{V_PK+2}, 3, v{V_PK}
    v_lshlrev_b32 v{V_PK+2}, 3, v{V_PK+2}
    v_and_b32 v{V_PK+4}, 1, v{V_PK+3}
    v_lshlrev_b32 v{V_PK+4}, 5, v{V_PK+4}
    v_add_u32 v{V_PK+4}, v{V_PK+4}, v{V_PK+2}
    v_lshlrev_b32 v{V_PK+5}, 3, v{V_T2}          ; 8*half
    v_add_u32 v{V_PK+5}, v{V_PK+5}, v{V_PK+1}
    v_lshlrev_b32 v{V_PK+5}, 6, v{V_PK+5}
    v_add_u32 v{V_PK+5}, v{V_PK+5}, v{V_PK+4}
    v_add_u32 v{V_P0}, {WB[0]}, v{V_PK+5}
    v_add_u32 v{V_P1}, {WB[1]}, v{V_PK+5}
    ''')
    for par in range(2):
        a(f'''
        v_lshrrev_b32 v{V_PK}, 4, v{V_LANE}
        v_add_u32 v{V_PK}, {4*par}, v{V_PK}
        v_and_b32 v{V_PK+1}, 7, v{V_LANE}
        v_xor_b32 v{V_PK}, v{V_PK}, v{V_PK+1}
        v_lshlrev_b32 v{V_PK}, 4, v{V_PK}
        v_lshrrev_b32 v{V_PK+1}, 3, v{V_LANE}
        v_mul_u32_u24 v{V_PK+1}, 1280, v{V_PK+1}
        v_add_u32 v{V_XG[par]}, v{V_PK}, v{V_PK+1}
        ''')
    a(f'''
    s_mul_i32 s{S_XLDS}, s{S_WAVE}, {4*TB*1024}
    s_lshl_b32 s{S_WLDS}, s{S_WAVE}, 10
    ''')

DMAF=''
def x_dma(TB, st):
    out=[]
    for n in range(4*TB):
        out.append([f's_add_u32 m0, s{S_XLDS}, {XB[st&1]+n*1024}',
                    f's_add_u32 s{S_T}, s{S_XBASE}, {n*8*1280}',
                    f'buffer_load_dwordx4 v{V_XG[n&1]}, {SRD_X}, s{S_T} offen {DMAF} lds'])
    out[-1].append(f's_add_u32 s{S_XBASE}, s{S_XBASE}, 128')
    return out
def w_dma(NFB, woff, sreg, step=True):
    out=[]
    for fb in range(NFB):
        m0=(f's_add_u32 m0, s{S_WWR}, {fb*4096}' if woff is None else f's_add_u32 m0, s{S_WLDS}, {WB[0]+woff*WSZ+fb*4096}')
        out.append([m0,
                    f's_add_u32 s{S_T}, s{sreg}, {fb*64}',
                    f'buffer_load_dwordx4 v{V_WG}, {SRD_W}, s{S_T} offen {DMAF} lds'])
    if step: out[-1].append(f's_add_u32 s{sreg}, s{sreg}, s{S_WSTEP}')
    return out

def frag_reads(TB,NFB,setidx,buf,ks):
    b=32*setidx
    ins=[]
    vw=V_W0 if buf==0 else V_W1
    for t in range(TB):
        ins.append(f'ds_read_b128 a[{b+24+4*t}:{b+24+4*t+3}], v{V_XA[ks]} offset:{XB[buf]+t*4096}')
    for fb in range(NFB):
        ins.append(f'ds_read_b64_tr_b16 a[{b+4*fb}:{b+4*fb+1}], v{vw} offset:{fb*4096+ks*1024}')
        ins.append(f'ds_read_b64_tr_b16 a[{b+4*fb+2}:{b+4*fb+3}], v{vw} offset:{fb*4096+ks*1024+256}')
    return ins
def acc_reg(TB,fb,t): return ACC+(fb*TB+t)*16
def mfmas(TB,NFB,setidx,first,orient='FT'):
    b=32*setidx; ins=[]
    for fb in range(NFB):
        for t in range(TB):
            r=acc_reg(TB,fb,t)
            c='0' if first else f'v[{r}:{r+15}]'
            W=f'a[{b+4*fb}:{b+4*fb+3}]'; X=f'a[{b+24+4*t}:{b+24+4*t+3}]'
            A,B=(W,X) if orient=='FT' else (X,W)
            ins.append(f'v_mfma_f32_32x32x16_bf16 v[{r}:{r+15}], {A}, {B}, {c}')
    return ins

def proj_item_setup(a, TB):
    a(f'''
    s_mul_i32 s{S_T}, s{S_WAVE}, {32*TB}
    s_add_u32 s{S_T}, s{S_T}, s{S_TOK0}
    s_mul_i32 s{S_XBASE}, s{S_T}, 1280
    s_lshl_b32 s{S_T}, s{S_WAVE}, 4
    s_mul_i32 s{S_WST}, s{S_T}, s{S_WSTRIDE}
    s_add_u32 s{S_WST}, s{S_WST}, s{S_COL}
    s_lshl_b32 s{S_WSTEP}, s{S_WSTRIDE}, 6
    v_lshrrev_b32 v{V_T}, 2, v{V_LANE}
    v_mul_lo_u32 v{V_T}, v{V_T}, s{S_WSTRIDE}
    v_and_b32 v{V_T2}, 3, v{V_LANE}
    v_lshlrev_b32 v{V_T2}, 4, v{V_T2}
    v_add_u32 v{V_WG}, v{V_T}, v{V_T2}
    ''')

VARIANT='base'
def proj_main(a, TB, NFB, orient='FT', vc_flag=None):
    a(f'v_mov_b32 v{V_WBASE}, v{V_W0}')
    pro=x_dma(TB,0)+w_dma(NFB,0,S_WST)+x_dma(TB,1)+w_dma(NFB,1,S_WST)+w_dma(NFB,2,S_WST)
    for g in pro:
        for x in g: a(x)
    a(f's_mov_b32 s{S_WCUR}, 0')
    a(f's_waitcnt vmcnt({4*TB+2*NFB})')
    a('s_barrier')
    for x in frag_reads(TB,NFB,0,0,0): a(x)
    state={'pend':[]}
    def cond_wo(buf):
        L=a.lab('CW')
        a(f's_cmp_eq_u32 {vc_flag}, 2\ns_cbranch_scc0 {L}')
        for g in wo_dma_at(WB[0]+buf*WSZ):
            for x in g: a(x)
        a(f'{L}:')
    def stage(buf, first=False, dma=True, last=False, st8=False):
        for ks in range(4):
            cur=ks&1
            extras=[]; pre=[]
            a('s_waitcnt lgkmcnt(0)')
            tailx=[]
            if ks<3:
                extras+=frag_reads(TB,NFB,cur^1,buf,ks+1)
                if ks==2 and not last:
                    vn=V_W1 if buf==0 else V_W0
                    tailx=[[f's_add_u32 s{S_WWN}, s{S_WCUR}, s{S_WLDS}', f's_add_u32 s{S_WWN}, s{S_WWN}, {WB[0]}'],
                           [f's_add_u32 s{S_WCUR}, s{S_WCUR}, {WSZ}', f's_cmp_eq_u32 s{S_WCUR}, {NWB*WSZ}', f's_cselect_b32 s{S_WCUR}, 0, s{S_WCUR}'],
                           [f'v_add_u32 v{V_WNX}, s{S_WCUR}, v{V_WBASE}']]
            elif not last:
                vn=V_W1 if buf==0 else V_W0
                if st8:
                    if vc_flag:
                        LA=a.lab('V8'); LB=a.lab('V9')
                        pre+= [f's_cmp_eq_u32 {vc_flag}, 2', f's_cbranch_scc1 {LA}', 's_waitcnt vmcnt(0)', f's_branch {LB}', f'{LA}:', 's_waitcnt vmcnt(6)', f'{LB}:']
                    else: pre.append('s_waitcnt vmcnt(0)')
                else: pre.append(f's_waitcnt vmcnt({NFB})')
                pre+= ['s_barrier', f'v_mov_b32 v{vn}, v{V_WNX}', f's_mov_b32 s{S_WWR}, s{S_WWN}']
                extras+=frag_reads(TB,NFB,cur^1,buf^1,0)
            if ks==3 and dma:
                state['pend']=x_dma(TB,buf)+w_dma(NFB,None,S_WST)
            if st8 and ks==0:
                state['pend']=[g for g in state['pend'] if 'SRDW' not in ''.join(g) and SRD_W not in ''.join(g)]
            quota={3:4*TB if TB==1 else 6, 0:5, 1:99, 2:0}[ks]
            if last: quota=99 if ks==0 else 0
            dm=state['pend'][:quota]; state['pend']=state['pend'][quota:]
            if 'nodma' in VARIANT: dm=[]
            mm=mfmas(TB,NFB,cur,first=(first and ks==0),orient=orient)
            body=[]; ei=0; di=0
            nm=len(mm)
            start_rd = 2 if pre else 0
            first_dma=max(start_rd, nm-max(len(dm),1)) if dm else nm
            for i,m in enumerate(mm):
                body.append(m)
                if pre and i==1: body.extend(pre)
                if i>=start_rd-1 if pre else True:
                    for _ in range(3):
                        if ei<len(extras) and (not pre or i>=1): body.append(extras[ei]); ei+=1
                if dm and i>=first_dma-1 and di<len(dm) and (not pre or i>=1):
                    body.extend(dm[di]); di+=1
                if tailx and i>=nm-3:
                    body.extend(tailx[i-(nm-3)])
            while ei<len(extras): body.append(extras[ei]); ei+=1
            while di<len(dm): body.extend(dm[di]); di+=1
            for x in body: a(x)
            if st8 and vc_flag and ks==1: cond_wo(1)
            if st8 and vc_flag and ks==3: cond_wo(2)
    stage(0,first=True)
    stage(1)
    L=a.lab('PL')
    a(f's_mov_b32 s{S_CNT}, 0\n{L}:')
    stage(0); stage(1)
    a(f's_add_u32 s{S_CNT}, s{S_CNT}, 1\ns_cmp_lt_u32 s{S_CNT}, 3\ns_cbranch_scc1 {L}')
    stage(0,dma=False,st8=True)
    stage(1,dma=False,last=True)

def pack_block(r, d):
    return [f'v_cvt_pk_bf16_f32 v{d+k}, v{r+2*k}, v{r+2*k+1}' for k in range(8)]
def swap_block(d):
    return [f'v_permlane32_swap_b32 v{d}, v{d+2}', f'v_permlane32_swap_b32 v{d+1}, v{d+3}',
            f'v_permlane32_swap_b32 v{d+4}, v{d+6}', f'v_permlane32_swap_b32 v{d+5}, v{d+7}']

def store_epilogue(a, TB, NFB, srd, flags=''):
    a('s_nop 7\ns_nop 7')
    k=0
    for fb in range(NFB):
        for t in range(TB):
            r=acc_reg(TB,fb,t); d=V_PK+8*(k&1); k+=1
            for x in pack_block(r,d): a(x)
            sd=S_D0 if t==0 else S_D1
            a(f's_add_u32 s{S_T}, s{sd}, {(2*fb)*65536}')
            a(f'buffer_store_dwordx4 v[{d}:{d+3}], v{V_ST}, {srd}, s{S_T} offen {flags}')
            a(f's_add_u32 s{S_T}, s{sd}, {(2*fb+1)*65536}')
            a(f'buffer_store_dwordx4 v[{d+4}:{d+7}], v{V_ST}, {srd}, s{S_T} offen {flags}')

TS_ON=True
def ts(a, idx, wave_reg=S_WAVE, real=False, vt=14):
    import gemm as _m
    if not _m.TS_ON: return
    L=a.lab('TS')
    a(f'''
    s_cmp_eq_u32 s{wave_reg}, 0
    s_cbranch_scc0 {L}
    {'s_memrealtime' if real else 's_memtime'} s[70:71]
    s_waitcnt lgkmcnt(0)
    s_lshl_b32 s72, s2, 8
    s_add_u32 s72, s72, {WS_TS+idx*4}
    v_mov_b32 v{vt}, s70
    s_mov_b64 s[70:71], exec
    s_mov_b64 exec, 1
    buffer_store_dword v{vt}, off, {SRD_WS}, s72
    s_mov_b64 exec, s[70:71]
    {L}:
    ''')

S_WO=65+10
S_C0=76; S_C1=77
ACC2=[160,176,192,208,224,240,32,48]
NOB=3
S_OCUR=81; S_OWR=82; V_PBASE=2
def wo_dma_at(ldsbase):
    out=[]
    for nb in range(2):
        for q in range(3):
            m0=(f's_add_u32 m0, s{S_OWR}, {nb*12288+q*1024}' if ldsbase is None else f's_add_u32 m0, s{S_WOL}, {ldsbase+nb*12288+q*1024}')
            out.append([m0,
                        f's_add_u32 s{S_T}, s{S_WO}, {q*16*1280+nb*64}',
                        f'buffer_load_dwordx4 v{V_WG2}, {SRD_O}, s{S_T} offen lds'])
    out[-1].append(f's_add_u32 s{S_WO}, s{S_WO}, 128')
    return out
S_WOL=78
V_WG2=15
def wo_reads(j,b):
    vp=V_P0 if (j&1)==0 else V_P1
    s=8*(b%8); ins=[]
    for nb in range(2):
        ins.append(f'ds_read_b64_tr_b16 a[{s+4*nb}:{s+4*nb+1}], v{vp} offset:{nb*12288+b*1024}')
        ins.append(f'ds_read_b64_tr_b16 a[{s+4*nb+2}:{s+4*nb+3}], v{vp} offset:{nb*12288+b*1024+256}')
    return ins
def vfrag(TB,tb,b):
    k=(b>>1)*TB+tb
    r=ACC+8*k+4*(b&1)
    return f'v[{r}:{r+3}]'
def acc2(TB,par,tb,nb): return ACC2[par*4+tb*2+nb] if TB==2 else ACC2[par*2+nb]
def c_epi_block(TB,par,tb,nb,d,flags,adv=False):
    r=acc2(TB,par,tb,nb)
    sd=S_C0 if tb==0 else S_C1
    g=[]
    g.append(pack_block(r,d)[:4]); g.append(pack_block(r,d)[4:])
    g.append([f's_add_u32 s{S_T}, s{sd}, {(2*nb)*65536}', f'buffer_store_dwordx4 v[{d}:{d+3}], v{V_STC}, {SRD_WS}, s{S_T} offen {flags}'])
    last=[f'buffer_store_dwordx4 v[{d+4}:{d+7}], v{V_STC}, {SRD_WS}, s{S_T} offen offset:512 {flags}']
    if adv: last+= [f's_add_u32 s{S_C0}, s{S_C0}, {4*65536}', f's_add_u32 s{S_C1}, s{S_C1}, {4*65536}']
    g.append(last)
    import os
    if os.environ.get('NOCST','0')=='1': g=[[x for x in gg if not x.startswith('buffer_store')] or ['s_nop 0'] for gg in g]
    if os.environ.get('NOCVT','0')=='1': g=[[x for x in gg if not x.startswith('v_cvt')] or ['s_nop 0'] for gg in g]
    return g
def vc_stage2(a, TB, flags=''):
    a('s_barrier')
    for g in wo_dma_at(WB[0]):
        for x in g: a(x)
    a(f'v_mov_b32 v{V_PBASE}, v{V_P0}\nv_add_u32 v{V_P0}, {WSZ}, v{V_PBASE}\ns_mov_b32 s{S_OCUR}, {WSZ}')
    a('s_nop 7\ns_nop 7')
    for k in range(6*TB):
        r=ACC+16*k; d=ACC+8*k
        for i in range(8): a(f'v_cvt_pk_bf16_f32 v{d+i}, v{r+2*i}, v{r+2*i+1}')
    a(f's_waitcnt vmcnt({6*(NOB-1)})\ns_barrier')
    for x in wo_reads(0,0)+wo_reads(0,1): a(x)
    nst=2*2*TB
    def epi_list(par):
        epi=[]; k=0
        for tb in range(TB):
            for nb in range(2):
                epi+=c_epi_block(TB,par,tb,nb,PK2[k&1],flags,adv=(tb==TB-1 and nb==1)); k+=1
        return epi
    def body(par, with_epi, last, vm):
        epi=epi_list(par^1) if with_epi else []
        ei=0
        for b in range(12):
            s=8*(b%8)
            extras=[]
            if b==10:
                a('s_waitcnt lgkmcnt(0)')
                if not last:
                    vn=V_P1 if par==0 else V_P0
                    a(f"""
                    s_add_u32 s{S_OWR}, s{S_OCUR}, s{S_WOL}
                    s_add_u32 s{S_OWR}, s{S_OWR}, {WB[0]}
                    s_add_u32 s{S_OCUR}, s{S_OCUR}, 24576
                    s_cmp_eq_u32 s{S_OCUR}, {NOB*24576}
                    s_cselect_b32 s{S_OCUR}, 0, s{S_OCUR}
                    v_add_u32 v{vn}, s{S_OCUR}, v{V_PBASE}
                    s_waitcnt vmcnt({vm})
                    s_barrier
                    """)
            elif b==11:
                a('s_waitcnt lgkmcnt(4)' if not last else 's_waitcnt lgkmcnt(0)')
            else:
                a('s_waitcnt lgkmcnt(4)')
            if b<10: extras+=[[x] for x in wo_reads(par,b+2)]
            elif not last: extras+=[[x] for x in wo_reads(par^1,b-10)]
            if b==10 and not last: extras+=wo_dma_at(None)[:3]
            if b==11 and not last: extras+=wo_dma_at(None)[3:]
            mm=[]
            for tb in range(TB):
                for nb in range(2):
                    r=acc2(TB,par,tb,nb)
                    c='0' if b==0 else f'v[{r}:{r+15}]'
                    mm.append(f'v_mfma_f32_32x32x16_bf16 v[{r}:{r+15}], {vfrag(TB,tb,b)}, a[{s+4*nb}:{s+4*nb+3}], {c}')
            eg=[]
            if epi and 1<=b<=9:
                upto=(len(epi)*b+8)//9
                while ei<upto: eg.append(epi[ei]); ei+=1
            for x in interleave(mm,extras+eg): a(x)
        assert ei==len(epi)
    base=6*(NOB-2)
    body(0,False,False,base)
    L=a.lab('VL')
    a(f's_mov_b32 s{S_CNT}, 0\n{L}:')
    body(1,True,False,base+nst); body(0,True,False,base+2*nst)
    a(f's_add_u32 s{S_CNT}, s{S_CNT}, 1\ns_cmp_lt_u32 s{S_CNT}, 4\ns_cbranch_scc1 {L}')
    body(1,True,True,0)
    a('s_nop 7\ns_nop 7')
    for g in epi_list(1):
        for x in g: a(x)
PK2=[16,24]
```

```python
from common import *
import gemm
from gemm import *
def phi_store_epilogue(a, TB, NFB, s_cb0, flags=''):
    a('s_nop 7\ns_nop 7')
    a(f's_mov_b32 s{S_T3}, 0x3fb8aa3b')
    a(f'v_mov_b32 v{V_T}, 0x358637bd')
    k=0
    for fb in range(NFB):
        L=a.lab('PH')
        a(f's_add_u32 s{S_T2}, s{s_cb0}, {fb}\ns_cmp_ge_u32 s{S_T2}, 40\ns_cbranch_scc1 {L}')
        for t in range(TB):
            r=acc_reg(TB,fb,t)
            for i in range(16):
                x=r+i; tmp=V_PK+(i&7)
                a(f'v_min_f32 v{tmp}, 0, v{x}\nv_mul_f32 v{tmp}, s{S_T3}, v{tmp}\nv_exp_f32 v{tmp}, v{tmp}\nv_max_f32 v{x}, 0, v{x}\nv_add_f32 v{x}, v{x}, v{V_T}\nv_add_f32 v{x}, v{x}, v{tmp}')
        a(f'{L}:')
        for t in range(TB):
            r=acc_reg(TB,fb,t); d=V_PK+8*(k&1); k+=1
            for x in pack_block(r,d): a(x)
            sd=S_D0 if t==0 else S_D1
            a(f's_add_u32 s{S_T}, s{sd}, {(2*fb)*65536}')
            a(f'buffer_store_dwordx4 v[{d}:{d+3}], v{V_ST}, {SRD_WS}, s{S_T} offen {flags}')
            a(f's_add_u32 s{S_T}, s{sd}, {(2*fb+1)*65536}')
            a(f'buffer_store_dwordx4 v[{d+4}:{d+7}], v{V_ST}, {SRD_WS}, s{S_T} offen {flags}')

def out_epilogue(a, TB, NFB, srd, v_ol, flags=''):
    a('s_nop 7\ns_nop 7')
    k=0
    for fb in range(NFB):
        for t in range(TB):
            r=acc_reg(TB,fb,t); d=V_PK+8*(k&1); k+=1
            for x in pack_block(r,d): a(x)
            sd=S_D0 if t==0 else S_D1
            a(f'buffer_store_dwordx4 v[{d}:{d+3}], v{v_ol}, {srd}, s{sd} offen offset:{fb*64} {flags}')
            a(f'buffer_store_dwordx4 v[{d+4}:{d+7}], v{v_ol}, {srd}, s{sd} offen offset:{fb*64+32} {flags}')

K_WAVE=48; K_I=49; K_T=51; K_T2=52; K_PK=53; K_V0=54; K_V1=55; K_V2=56; K_LB=57; K_SEG=58
KV_LANE=1; KV_TR=2; KV_TRP=3; KV_LIN=4; KV_T0=5; KV_T1=6; KV_T2=7; KV_HF=8; KV_HALF=9; KV_WG=10; KV_ST=11
KV_ACC=64
KV_FA=16
KV_ONE=48
KV_B=128
KV_RD=160
KV_M=192
LDS_KV=131072
def a2_item(a, P_WO, ldf=''):
    a(f'''
    v_and_b32 v{KV_LANE}, 63, v0
    v_lshrrev_b32 v{KV_T0}, 6, v0
    s_nop 0
    v_readfirstlane_b32 s{K_WAVE}, v{KV_T0}
    v_lshlrev_b32 v{KV_LIN}, 4, v{KV_LANE}
    v_lshrrev_b32 v{KV_HALF}, 5, v{KV_LANE}
    v_and_b32 v{KV_T0}, 15, v{KV_LANE}
    v_lshrrev_b32 v{KV_T1}, 2, v{KV_T0}
    v_lshl_add_u32 v{KV_T1}, v{KV_HALF}, 3, v{KV_T1}
    v_lshlrev_b32 v{KV_TR}, 5, v{KV_T1}
    v_and_b32 v{KV_T0}, 3, v{KV_T0}
    v_lshl_add_u32 v{KV_TR}, v{KV_T0}, 3, v{KV_TR}
    v_bfe_u32 v{KV_T1}, v{KV_LANE}, 4, 1
    v_lshl_add_u32 v{KV_TR}, v{KV_T1}, 10, v{KV_TR}
    s_mul_i32 s{K_LB}, s{K_WAVE}, 32768
    v_add_u32 v{KV_TR}, s{K_LB}, v{KV_TR}
    v_and_b32 v{KV_T0}, 15, v{KV_LANE}
    v_lshrrev_b32 v{KV_T2}, 2, v{KV_T0}
    v_lshl_add_u32 v{KV_T2}, v{KV_HALF}, 2, v{KV_T2}
    v_lshlrev_b32 v{KV_TRP}, 6, v{KV_T2}
    v_lshl_add_u32 v{KV_TRP}, v{KV_T1}, 5, v{KV_TRP}
    v_and_b32 v{KV_T0}, 3, v{KV_T0}
    v_lshl_add_u32 v{KV_TRP}, v{KV_T0}, 3, v{KV_TRP}
    v_add_u32 v{KV_TRP}, s{K_LB}, v{KV_TRP}
    v_mov_b32 v{KV_ONE}, 0x3f803f80
    v_mov_b32 v{KV_ONE+1}, 0x3f803f80
    v_mov_b32 v{KV_ONE+2}, 0x3f803f80
    v_mov_b32 v{KV_ONE+3}, 0x3f803f80
    s_lshl_b32 s{K_T}, s{K_I}, 1
    s_add_u32 s{K_PK}, s{K_T}, 40
    s_lshl_b32 s{K_PK}, s{K_PK}, 16
    s_add_u32 s{K_PK}, s{K_PK}, {WS_QA}
    s_sub_u32 s{K_T2}, s{K_I}, 1
    s_max_i32 s{K_T2}, s{K_T2}, 0
    s_lshl_b32 s{K_V0}, s{K_T2}, 1
    s_add_u32 s{K_V0}, s{K_V0}, 80
    s_lshl_b32 s{K_V0}, s{K_V0}, 16
    s_add_u32 s{K_V0}, s{K_V0}, {WS_QA}
    s_add_u32 s{K_V1}, s{K_T}, 80
    s_lshl_b32 s{K_V1}, s{K_V1}, 16
    s_add_u32 s{K_V1}, s{K_V1}, {WS_QA}
    s_add_u32 s{K_T2}, s{K_I}, 1
    s_min_u32 s{K_T2}, s{K_T2}, 19
    s_lshl_b32 s{K_V2}, s{K_T2}, 1
    s_add_u32 s{K_V2}, s{K_V2}, 80
    s_lshl_b32 s{K_V2}, s{K_V2}, 16
    s_add_u32 s{K_V2}, s{K_V2}, {WS_QA}
    s_lshl_b32 s{K_SEG}, s{K_WAVE}, 14
    ''')
    for r in range(64): a(f'v_mov_b32 v{KV_ACC+r}, 0')
    a(f's_mov_b32 s59, 0\nA2_LOOP:')
    for sg in range(4):
        for bi,(base,sub) in enumerate(((K_PK,0),(K_PK,1),(K_V0,0),(K_V0,1),(K_V1,0),(K_V1,1),(K_V2,0),(K_V2,1))):
            a(f'''
            s_add_u32 m0, s{K_LB}, {(sg*8+bi)*1024}
            s_add_u32 s{K_T}, s{base}, s{K_SEG}
            s_add_u32 s{K_T}, s{K_T}, {sub*65536+sg*1024}
            buffer_load_dwordx4 v{KV_LIN}, {SRD_WS}, s{K_T} offen {ldf} lds
            ''')
    a('s_waitcnt vmcnt(0)')
    for sg in range(4):
        for kb in range(2):
            o=sg*8192+kb*16*32
            f=KV_FA
            a(f'ds_read_b64_tr_b16 v[{f}:{f+1}], v{KV_TR} offset:{o}\nds_read_b64_tr_b16 v[{f+2}:{f+3}], v{KV_TR} offset:{o+128}')
            for j in range(3):
                a(f'ds_read_b64_tr_b16 v[{f+4+4*j}:{f+5+4*j}], v{KV_TR} offset:{o+2048*(j+1)}\nds_read_b64_tr_b16 v[{f+6+4*j}:{f+7+4*j}], v{KV_TR} offset:{o+2048*(j+1)+128}')
            a('s_waitcnt lgkmcnt(0)')
            first=(sg==0 and kb==0)
            for j in range(3):
                d=KV_ACC+16*j
                a(f'v_mfma_f32_32x32x16_bf16 v[{d}:{d+15}], v[{f+4+4*j}:{f+7+4*j}], v[{f}:{f+3}], v[{d}:{d+15}]')
            d=KV_ACC+48
            a(f'v_mfma_f32_32x32x16_bf16 v[{d}:{d+15}], v[{KV_ONE}:{KV_ONE+3}], v[{f}:{f+3}], v[{d}:{d+15}]')
            a('s_nop 3')
    a(f'''
    s_add_u32 s{K_SEG}, s{K_SEG}, 4096
    s_add_u32 s59, s59, 1
    s_cmp_lt_u32 s59, 4
    s_cbranch_scc1 A2_LOOP
    s_nop 7
    s_nop 7
    s_barrier
    ''')
    a(f's_lshl_b32 s{K_T}, s{K_WAVE}, 14\nv_add_u32 v{KV_T0}, s{K_T}, v{KV_LIN}')
    for j in range(4):
        for q in range(4):
            a(f'ds_write_b128 v{KV_T0}, v[{KV_ACC+16*j+4*q}:{KV_ACC+16*j+4*q+3}] offset:{(j*4+q)*1024}')
    a('s_waitcnt lgkmcnt(0)\ns_barrier')
    a(f's_lshl_b32 s{K_T}, s{K_WAVE}, 12\nv_add_u32 v{KV_T0}, s{K_T}, v{KV_LIN}')
    R=KV_RD
    for w in range(4):
        for q in range(4):
            a(f'ds_read_b128 v[{R+16*w+4*q}:{R+16*w+4*q+3}], v{KV_T0} offset:{w*16384+q*1024}')
    a('s_waitcnt lgkmcnt(0)')
    for k in range(0,16,2):
        a(f'v_pk_add_f32 v[{R+k}:{R+k+1}], v[{R+k}:{R+k+1}], v[{R+16+k}:{R+16+k+1}]')
        a(f'v_pk_add_f32 v[{R+32+k}:{R+32+k+1}], v[{R+32+k}:{R+32+k+1}], v[{R+48+k}:{R+48+k+1}]')
    for k in range(0,16,2): a(f'v_pk_add_f32 v[{R+k}:{R+k+1}], v[{R+k}:{R+k+1}], v[{R+32+k}:{R+32+k+1}]')
    a('s_barrier')
    LZ=a.lab('AZ'); LN=a.lab('AN')
    a(f's_cmp_eq_u32 s{K_WAVE}, 3\ns_cbranch_scc1 {LZ}')
    a(f'''
    v_and_b32 v{KV_T0}, 31, v{KV_LANE}
    s_lshl_b32 s{K_T}, s{K_I}, 5
    v_add_u32 v{KV_T0}, s{K_T}, v{KV_T0}
    v_mul_u32_u24 v{KV_HF}, 3277, v{KV_T0}
    v_lshrrev_b32 v{KV_HF}, 16, v{KV_HF}          ; f/20
    s_add_u32 s{K_T}, s{K_I}, s{K_WAVE}
    s_sub_u32 s{K_T}, s{K_T}, 1
    s_lshl_b32 s{K_T2}, s{K_T}, 5
    v_lshlrev_b32 v{KV_T1}, 2, v{KV_HALF}
    v_add_u32 v{KV_T1}, s{K_T2}, v{KV_T1}
    ''')
    for r in range(16):
        q,i=divmod(r,4)
        a(f'''
        v_add_u32 v{KV_T2}, {8*q+i}, v{KV_T1}
        v_max_i32 v{KV_T0}, 0, v{KV_T2}
        v_mul_u32_u24 v{KV_T0}, 3277, v{KV_T0}
        v_lshrrev_b32 v{KV_T0}, 16, v{KV_T0}
        v_cmp_eq_u32 vcc, v{KV_T0}, v{KV_HF}
        v_cmp_le_i32 s[60:61], 0, v{KV_T2}
        s_nop 1
        s_and_b64 vcc, vcc, s[60:61]
        s_nop 1
        v_cndmask_b32 v{R+r}, 0, v{R+r}, vcc
        ''')
    for k in range(8): a(f'v_cvt_pk_bf16_f32 v{R+16+k}, v{R+2*k}, v{R+2*k+1}')
    a(f's_lshl_b32 s{K_T}, s{K_WAVE}, 11\ns_add_u32 s{K_T}, s{K_T}, {KVM_LDS}\nv_add_u32 v{KV_T0}, s{K_T}, v{KV_LIN}')
    a(f'ds_write_b128 v{KV_T0}, v[{R+16}:{R+19}] offset:0\nds_write_b128 v{KV_T0}, v[{R+20}:{R+23}] offset:1024')
    a(f's_branch {LN}\n{LZ}:')
    a(f'''
    v_lshlrev_b32 v{KV_T0}, 2, v{KV_LANE}
    s_lshl_b32 s{K_T}, s{K_I}, 7
    s_add_u32 s{K_T}, s{K_T}, {WS_Z}
    s_mov_b32 exec_hi, 0
    buffer_store_dword v{R}, v{KV_T0}, {SRD_WS}, s{K_T} offen {gemm_store_flags()}
    s_mov_b64 exec, -1
    {LN}:
    ''')
    a(f'''
    s_mov_b32 s36, s{P_WO}
    s_mov_b32 s37, s{P_WO+1}
    s_mov_b32 s38, {640*640*2}
    s_mov_b32 s39, 0x20000
    v_lshrrev_b32 v{KV_T0}, 2, v{KV_LANE}
    v_mul_u32_u24 v{KV_WG}, 1280, v{KV_T0}
    v_and_b32 v{KV_T0}, 3, v{KV_LANE}
    v_lshl_add_u32 v{KV_WG}, v{KV_T0}, 4, v{KV_WG}
    s_sub_u32 s{K_T2}, s{K_I}, 1
    s_max_i32 s{K_T2}, s{K_T2}, 0
    ''')
    for j in range(3):
        a(f'''
        s_add_u32 s60, s{K_I}, {j}
        s_sub_u32 s60, s60, 1
        s_max_i32 s60, s60, 0
        s_min_u32 s60, s60, 19
        s_mul_i32 s60, s60, {32*1280}
        s_mul_i32 s61, s{K_WAVE}, 320
        s_add_u32 s60, s60, s61
        ''')
        for nb in range(5):
            for hf in range(2):
                a(f'''
                s_add_u32 m0, s{K_LB}, {nb*6144+(j*2+hf)*1024}
                s_add_u32 s{K_T}, s60, {hf*16*1280+nb*64}
                buffer_load_dwordx4 v{KV_WG}, s[36:39], s{K_T} offen lds
                ''')
    a('s_waitcnt vmcnt(0) lgkmcnt(0)\ns_barrier')
    for j in range(3):
        if j==0: a(f'v_add_u32 v{KV_T0}, {KVM_LDS}, v{KV_LIN}')
        a(f'ds_read_b128 v[{KV_B+8*j}:{KV_B+8*j+3}], v{KV_T0} offset:{j*2048}\nds_read_b128 v[{KV_B+8*j+4}:{KV_B+8*j+7}], v{KV_T0} offset:{j*2048+1024}')
    MA=KV_ACC
    for nb in range(5):
        for b in range(6):
            f=KV_FA+4*(b&1)
            a(f'ds_read_b64_tr_b16 v[{f}:{f+1}], v{KV_TRP} offset:{nb*6144+b*1024}\nds_read_b64_tr_b16 v[{f+2}:{f+3}], v{KV_TRP} offset:{nb*6144+b*1024+512}')
            a('s_waitcnt lgkmcnt(0)')
            d=MA+16*(nb&1)
            c='0' if b==0 else f'v[{d}:{d+15}]'
            a(f'v_mfma_f32_32x32x16_bf16 v[{d}:{d+15}], v[{f}:{f+3}], v[{KV_B+4*b}:{KV_B+4*b+3}], {c}')
        a('s_nop 7\ns_nop 7')
        d=MA+16*(nb&1); p=KV_RD
        for k in range(8): a(f'v_cvt_pk_bf16_f32 v{p+k}, v{d+2*k}, v{d+2*k+1}')
        a('s_nop 1')
        for x in swap_block(p): a(x)
        if nb==0:
            a(f'''
            v_and_b32 v{KV_T0}, 31, v{KV_LANE}
            v_mul_u32_u24 v{KV_ST}, 1280, v{KV_T0}
            v_lshl_add_u32 v{KV_ST}, v{KV_HALF}, 4, v{KV_ST}
            s_mul_i32 s60, s{K_I}, {32*1280}
            s_mul_i32 s61, s{K_WAVE}, 320
            s_add_u32 s60, s60, s61
            s_add_u32 s60, s60, {WS_M}
            ''')
        a(f'buffer_store_dwordx4 v[{p}:{p+3}], v{KV_ST}, {SRD_WS}, s60 offen offset:{nb*64} {gemm_store_flags()}')
        a(f'buffer_store_dwordx4 v[{p+4}:{p+7}], v{KV_ST}, {SRD_WS}, s60 offen offset:{nb*64+32} {gemm_store_flags()}')
KVM_LDS=131072
LDS_KV=131072+6144
STORE_FLAGS=''
def gemm_store_flags(): return STORE_FLAGS

def ascale_item(a, s_seg, ldf=''):
    T0=1;T1=2;QO=3;ZO=4;OO=5
    Q=8
    Z=48
    F=128
    DN=208
    a(f'''
    v_and_b32 v{T0}, 31, v0
    v_lshrrev_b32 v{T1}, 5, v0                   ; part
    v_mul_u32_u24 v{QO}, {5*65536}, v{T1}
    v_lshl_add_u32 v{QO}, v{T0}, 5, v{QO}
    v_mul_u32_u24 v{ZO}, 320, v{T1}
    v_mul_u32_u24 v{OO}, 1280, v{T0}
    v_mul_u32_u24 v{T1}, 160, v{T1}
    v_add_u32 v{OO}, v{OO}, v{T1}
    s_lshl_b32 s51, s{s_seg}, 10
    s_add_u32 s51, s51, {WS_QA}
    ''')
    for k in range(5):
        a(f's_add_u32 s52, s51, {k*65536}')
        a(f'buffer_load_dwordx4 v[{Q+8*k}:{Q+8*k+3}], v{QO}, {SRD_WS}, s52 offen {ldf}')
        a(f'buffer_load_dwordx4 v[{Q+8*k+4}:{Q+8*k+7}], v{QO}, {SRD_WS}, s52 offen offset:16 {ldf}')
    a(f's_mov_b32 s52, {WS_Z}')
    for k in range(20): a(f'buffer_load_dwordx4 v[{Z+4*k}:{Z+4*k+3}], v{ZO}, {SRD_WS}, s52 offen offset:{16*k} {ldf}')
    a('s_waitcnt vmcnt(0)')
    for k in range(40):
        a(f'v_lshlrev_b32 v{F+2*k}, 16, v{Q+k}\nv_and_b32 v{F+2*k+1}, 0xffff0000, v{Q+k}')
    for h in range(4):
        d=DN+h
        a(f'v_mov_b32 v{d}, 0x358637bd')
        for k in range(20): a(f'v_fmac_f32 v{d}, v{F+20*h+k}, v{Z+20*h+k}')
        a(f'v_rcp_f32 v{d}, v{d}')
    a('s_nop 0')
    for h in range(4):
        for k in range(20): a(f'v_mul_f32 v{F+20*h+k}, v{F+20*h+k}, v{DN+h}')
    for k in range(40): a(f'v_cvt_pk_bf16_f32 v{Q+k}, v{F+2*k}, v{F+2*k+1}')
    a(f's_mul_i32 s52, s{s_seg}, {32*1280}\ns_add_u32 s52, s52, {WS_PQ}')
    for k in range(10): a(f'buffer_store_dwordx4 v[{Q+4*k}:{Q+4*k+3}], v{OO}, {SRD_WS}, s52 offen offset:{16*k} {gemm_store_flags()}')
```

```python
from common import *
SRD_WS='s[40:43]'; SRD_A='s[32:35]'
R_WAVE=48; R_G=49; R_I=50; R_H=51; R_JJ=52; R_STEP=53; R_NT=54
R_SL0=55; R_SL1=56; R_SL2=57; R_SL3=58
R_SG0=59; R_SG2=60
R_T=61; R_T2=62; R_T3=63; R_SPIN=64; R_CT=65
R_KX=66; R_CXO=67; R_UM=68; R_KM=69
R_MLO=76; R_MHI=77
R_KMLO=78; R_KMHI=79
R_SST=82; R_GST=84; R_MST=85; R_GLD=86
R_PAR=87; R_CSC=88; R_CT0=89; R_CT1=90; R_CT2=91; R_XLB=92
R_VO=30
R_G0=31; R_G1=74; R_G2=75
R_SI=80
R_PFL=81
V_UG=2
V_KXL=100
V_LANE=1; V_LIN=3; V_RED=4; V_SP=5; V_SLD=6; V_SLDM=7; V_MST=8; V_GLD=9; V_KXO=10; V_CO=11; V_UO=12; V_KMO=13; V_LINW=14
V_T0=15; V_T1=16; V_T2=17; V_T3=18; V_IDX=19; V_NEG1=20
V_A=24
V_U=24; V_SR=36; V_O=36; V_E=48
V_D=64; V_SM=64; V_MX=68; V_MX2=69
V_TW=76; V_TR=77; V_TWK=78; V_TRK=79; V_SUM=80; V_SUM2=81; V_SPM=82
V_RD=84; V_VF=84
V_KXN=100
V_Q=108; V_K=114; V_KX=120
V_P=128; V_SO=136
V_C=140; V_CN=152
V_UP=164
V_ONE=172
V_SS=176
V_GP=180
V_MP=170
V_SPG=101; V_MSG=102; V_HALF=103; V_CAN=104; V_CK=105
V_UX=92; V_KXX=96; V_UXA=106; V_KXA=107
V_WO=184
def wqk(tile,st): return (tile*10+st)*8
def wo(ctk,st): return V_WO+(ctk*3+st)*8
LDS_M=0
LDS_T=10240
LDS_R2=13824
LDS_U=26112
LDS_PF=32768
LDS_STG=32768
LDS_REC=147456
LOC=''
KM_FLAGS=''
SPIN_BUDGET=300000
SLEEPN=12
FUSED=False
TSHOOK=None
WHOOK=None
WS_PROG=WS_CTR
PROF=False
NPT=8
DELAY_M=0; DELAY_S=0; DELAY_G=0
EB=10; W3DELAY=0; ONES=True; EARLYB=True; WAITPF=False; PARX=0; PF_POS='G'; RS_POS='G'; NOADV=False; NOPF=False; NORS=False; NOST=False

PSETS={'0':['Msucc','bar1b','Spub','SVsucc','bar2','Gpub','Gsucc','end'],
       'A':['Msucc','bcast','smf','bar1b','Spub','SVsucc','Gsucc','end'],
       'B':['Msucc','Spub','SVsucc','Pready','PG','bar2','Gsucc','end']}
PSET='0'
PNAMES={0:'Msucc',1:'bar1b',2:'Spub',3:'SVsucc',4:'bar2',5:'Gpub',6:'Gsucc',7:'end'}
def pt(a,k):
    if not PROF: return
    name=PNAMES.get(k,k)
    L=PSETS[PSET]
    if name not in L: return
    i=L.index(name)
    a(f's_memtime s[{4+2*i}:{5+2*i}]')
def pt_acc(a):
    if not PROF: return
    a('s_waitcnt lgkmcnt(0)')
    a(f's_sub_u32 s72, s4, s71\ns_add_u32 s94, s94, s72')
    for k in range(1,NPT):
        a(f's_sub_u32 s72, s{4+2*k}, s{4+2*(k-1)}\ns_add_u32 s{94+k}, s{94+k}, s72')
    a(f's_mov_b32 s71, s{4+2*(NPT-1)}')
def dump_prof(a):
    if not PROF: return
    for k in range(8):
        a(f"""
        s_lshl_b32 s72, s2, 8
        s_mul_i32 s73, s{R_WAVE}, 32
        s_add_u32 s72, s72, s73
        s_add_u32 s72, s72, {WS_TS+128+k*4}
        v_mov_b32 v15, s{94+k}
        s_mov_b64 exec, 1
        buffer_store_dword v15, off, {SRD_WS}, s72
        s_mov_b64 exec, -1
        """)
def poll_tail(a, L):
    D=a.lab('PD')
    a(f'''
    s_cbranch_vccz {D}
    s_sub_u32 s{R_SPIN}, s{R_SPIN}, 1
    s_cbranch_scc0 {L}
    s_mov_b32 s{R_SPIN}, 0
    {D}:
    ''')
def poll_tail_sleep(a, L, n=None):
    n=n or SLEEPN
    D=a.lab('PD')
    a(f'''
    s_cbranch_vccz {D}
    s_sleep {n}
    s_sub_u32 s{R_SPIN}, s{R_SPIN}, 1
    s_cbranch_scc0 {L}
    s_mov_b32 s{R_SPIN}, 0
    {D}:
    ''')
def maxchain(a, regs):
    regs=list(regs)
    cur=[V_T0,V_T1]; first=[True,True]; k=0; i=0
    while i<len(regs):
        t=cur[k&1]
        if first[k&1]:
            if len(regs)-i>=3: a(f'v_max3_u32 v{t}, v{regs[i]}, v{regs[i+1]}, v{regs[i+2]}'); i+=3
            elif len(regs)-i==2: a(f'v_max_u32 v{t}, v{regs[i]}, v{regs[i+1]}'); i+=2
            else: a(f'v_mov_b32 v{t}, v{regs[i]}'); i+=1
            first[k&1]=False
        else:
            if len(regs)-i>=2: a(f'v_max3_u32 v{t}, v{regs[i]}, v{regs[i+1]}, v{t}'); i+=2
            else: a(f'v_max_u32 v{t}, v{regs[i]}, v{t}'); i+=1
        k+=1
    if not first[1]: a(f'v_max_u32 v{V_T0}, v{V_T0}, v{V_T1}')
    a(f'v_cmp_eq_u32 vcc, -1, v{V_T0}')

def measure_parity(a):
    L=a.lab('MP')
    a(f'''
    v_cmp_eq_u32 vcc, 0, v0
    s_and_saveexec_b64 s[72:73], vcc
    s_cbranch_execz {L}
    v_mov_b32 v1, 0
    s_mov_b32 s74, {WS_XG+XG_PROBE}
    s_add_u32 s75, s74, 8192
    buffer_store_dword v1, off, {SRD_WS}, s74 sc1
    buffer_store_dword v1, off, {SRD_WS}, s75 sc1
    s_waitcnt vmcnt(0)
    ''')
    for k,reg in ((0,74),(1,75)):
        a('s_memtime s[76:77]\ns_waitcnt lgkmcnt(0)')
        for _ in range(6): a(f'buffer_store_dword v1, off, {SRD_WS}, s{reg} sc1\ns_waitcnt vmcnt(0)')
        a(f's_memtime s[78:79]\ns_waitcnt lgkmcnt(0)\ns_sub_u32 s{80+k}, s78, s76')
    a(f'''
    s_cmp_gt_u32 s81, s80
    s_cselect_b32 s82, 2, 1
    v_mov_b32 v1, s82
    s_mov_b32 s74, 68
    buffer_store_dword v1, off, s[44:47], s74 sc1
    v_mov_b32 v2, s80
    s_mov_b32 s74, 72
    buffer_store_dword v2, off, s[44:47], s74 sc1
    v_mov_b32 v2, s81
    s_mov_b32 s74, 76
    buffer_store_dword v2, off, s[44:47], s74 sc1
    s_waitcnt vmcnt(0)
    {L}:
    s_mov_b64 exec, s[72:73]
    ''')
XG_PROBE=4*XG_SLOT

def g_offsets(a):
    a(f'''
    s_lshr_b32 s{R_T}, s{R_CT}, 1
    s_lshl_b32 s{R_T}, s{R_T}, 14
    s_and_b32 s{R_T2}, s{R_CT}, 1
    s_lshl_b32 s{R_T2}, s{R_T2}, 12
    s_add_u32 s{R_GLD}, s{R_T}, s{R_T2}
    s_lshl_b32 s{R_T2}, s{R_PAR}, 13
    s_add_u32 s{R_GLD}, s{R_GLD}, s{R_T2}
    s_lshl_b32 s{R_T2}, s{R_G}, 9
    s_add_u32 s{R_GST}, s{R_GLD}, s{R_T2}
    ''')
    for CT,RG in ((R_CT0,R_G0),(R_CT1,R_G1),(R_CT2,R_G2)):
        a(f'''
        s_lshr_b32 s{R_T}, s{CT}, 1
        s_lshl_b32 s{R_T}, s{R_T}, 14
        s_and_b32 s{R_T2}, s{CT}, 1
        s_lshl_b32 s{R_T2}, s{R_T2}, 12
        s_add_u32 s{RG}, s{R_T}, s{R_T2}
        s_lshl_b32 s{R_T2}, s{R_PAR}, 13
        s_add_u32 s{RG}, s{RG}, s{R_T2}
        s_lshl_b32 s{R_T2}, s{R_G}, 9
        s_add_u32 s{RG}, s{RG}, s{R_T2}
        ''')

def rec_setup(a):
    a(f'''
    v_and_b32 v{V_LANE}, 63, v0
    v_lshrrev_b32 v{V_T0}, 6, v0
    s_nop 0
    v_readfirstlane_b32 s{R_WAVE}, v{V_T0}
    s_lshr_b32 s{R_T}, s{R_I}, 2
    s_lshl_b32 s{R_H}, s{R_G}, 2
    s_add_u32 s{R_H}, s{R_H}, s{R_T}
    s_and_b32 s{R_JJ}, s{R_I}, 3
    s_mov_b32 s{R_CT0}, s{R_I}
    s_add_u32 s{R_CT1}, s{R_I}, 16
    s_add_u32 s{R_CT2}, s{R_I}, 32
    s_cmp_lt_u32 s{R_I}, 8
    s_cselect_b32 s{R_NT}, 3, 2
    s_cselect_b32 s{R_CT2}, s{R_CT2}, s{R_CT1}
    s_lshl_b32 s{R_CT}, s{R_WAVE}, 4
    s_add_u32 s{R_CT}, s{R_CT}, s{R_I}
    s_mov_b32 s{R_SPIN}, {SPIN_BUDGET}
    v_lshrrev_b32 v{V_T1}, 4, v{V_LANE}
    v_and_b32 v{V_T2}, 15, v{V_LANE}
    v_and_b32 v{V_T3}, 7, v{V_LANE}
    v_bfe_u32 v{V_T0}, v{V_LANE}, 3, 1
    v_lshlrev_b32 v{V_LIN}, 4, v{V_LANE}
    s_lshl_b32 s{R_T}, s{R_WAVE}, 10
    v_add_u32 v{V_LINW}, s{R_T}, v{V_LIN}
    v_and_b32 v{V_RED}, 0x37, v{V_LANE}
    v_lshlrev_b32 v{V_RED}, 4, v{V_RED}
    v_lshl_add_u32 v{V_RED}, v{V_T0}, 11, v{V_RED}
    v_lshl_add_u32 v{V_SP}, v{V_T1}, 3, v{V_T3}
    v_lshlrev_b32 v{V_SPM}, 3, v{V_SP}
    v_lshlrev_b32 v{V_SP}, 4, v{V_SP}
    s_mul_i32 s{R_T}, s{R_WAVE}, 5120
    s_add_u32 s{R_T}, s{R_T}, {XL_S}
    v_lshlrev_b32 v{V_SLD}, 9, v{V_T0}
    v_add_u32 v{V_SLD}, v{V_SLD}, v{V_SP}
    v_add_u32 v{V_SLD}, 256, v{V_SLD}
    v_add_u32 v{V_SLD}, s{R_T}, v{V_SLD}
    v_lshl_add_u32 v{V_SLDM}, v{V_T0}, 2, v{V_SPM}
    v_add_u32 v{V_SLDM}, s{R_T}, v{V_SLDM}
    ; V_MST = (2r + (g4>>1))*16 + (g4&1)*8
    v_lshrrev_b32 v{V_MST}, 1, v{V_T1}
    v_lshl_add_u32 v{V_MST}, v{V_T3}, 1, v{V_MST}
    v_lshlrev_b32 v{V_MST}, 4, v{V_MST}
    v_and_b32 v{V_GLD}, 1, v{V_T1}
    v_lshl_add_u32 v{V_MST}, v{V_GLD}, 3, v{V_MST}
    v_lshlrev_b32 v{V_GLD}, 11, v{V_T0}
    v_add_u32 v{V_GLD}, v{V_GLD}, v{V_SP}
    ; V_KXO
    v_lshrrev_b32 v{V_KXO}, 2, v{V_T2}
    v_lshlrev_b32 v{V_KXO}, 3, v{V_KXO}
    v_and_b32 v{V_CO}, 3, v{V_T2}
    v_add_u32 v{V_KXO}, v{V_KXO}, v{V_CO}
    s_lshl_b32 s{R_T}, s{R_WAVE}, 2
    s_sub_u32 s{R_T}, s{R_T}, 4
    s_max_i32 s{R_T}, s{R_T}, 0
    v_add_u32 v{V_KXO}, s{R_T}, v{V_KXO}
    v_lshlrev_b32 v{V_KXO}, 5, v{V_KXO}
    v_lshl_add_u32 v{V_KXO}, v{V_T1}, 3, v{V_KXO}
    ; V_CO
    v_lshrrev_b32 v{V_CO}, 1, v{V_T1}
    v_lshlrev_b32 v{V_CO}, 9, v{V_CO}
    v_lshl_add_u32 v{V_CO}, v{V_T2}, 5, v{V_CO}
    v_and_b32 v{V_UO}, 1, v{V_T1}
    v_lshl_add_u32 v{V_CO}, v{V_UO}, 4, v{V_CO}
    v_lshlrev_b32 v{V_UO}, 4, v{V_T2}
    v_lshl_add_u32 v{V_UO}, v{V_T1}, 2, v{V_UO}
    v_lshrrev_b32 v{V_KMO}, 2, v{V_T2}
    v_lshlrev_b32 v{V_KMO}, 1, v{V_KMO}
    v_and_b32 v{V_TW}, 1, v{V_T2}
    v_add_u32 v{V_KMO}, v{V_KMO}, v{V_TW}
    v_lshlrev_b32 v{V_KMO}, 5, v{V_KMO}
    v_lshl_add_u32 v{V_KMO}, v{V_T1}, 3, v{V_KMO}
    v_lshlrev_b32 v{V_TW}, 4, v{V_T2}
    v_lshl_add_u32 v{V_TW}, v{V_T1}, 2, v{V_TW}
    v_add_u32 v{V_TW}, {LDS_T}, v{V_TW}                 ; e*16 + g4*4
    v_lshlrev_b32 v{V_TWK}, 5, v{V_T2}
    v_lshl_add_u32 v{V_TWK}, v{V_T1}, 3, v{V_TWK}
    v_add_u32 v{V_TWK}, {LDS_T+1536}, v{V_TWK}          ; e*32 + g4*8
    v_lshrrev_b32 v{V_TR}, 2, v{V_T2}
    v_lshl_add_u32 v{V_TR}, v{V_T1}, 2, v{V_TR}         ; row e = 4g4 + (i>>2)
    v_and_b32 v{V_IDX}, 3, v{V_T2}
    v_lshlrev_b32 v{V_IDX}, 3, v{V_IDX}                  ; chunk*8
    v_lshl_add_u32 v{V_TRK}, v{V_TR}, 5, v{V_IDX}
    v_add_u32 v{V_TRK}, {LDS_T+1536}, v{V_TRK}
    v_lshl_add_u32 v{V_TR}, v{V_TR}, 4, v{V_IDX}
    v_add_u32 v{V_TR}, {LDS_T}, v{V_TR}
    ; V_IDX
    v_and_b32 v{V_IDX}, 1, v{V_LANE}
    v_cmp_eq_u32 vcc, 1, v{V_IDX}
    v_mov_b32 v{V_IDX}, 0x4444
    v_mov_b32 v{V_NEG1}, 0xeeee
    s_nop 0
    v_cndmask_b32 v{V_IDX}, v{V_IDX}, v{V_NEG1}, vcc
    ; masks
    v_cmp_gt_u32 vcc, 8, v{V_T2}
    s_mov_b64 s[{R_MLO}:{R_MHI}], vcc
    v_and_b32 v{V_T0}, 2, v{V_T2}
    v_cmp_eq_u32 vcc, 0, v{V_T0}
    s_mov_b64 s[{R_KMLO}:{R_KMHI}], vcc
    v_mov_b32 v{V_NEG1}, -1
    v_mov_b32 v{V_NEG1+1}, -1
    v_mov_b32 v{V_NEG1+2}, -1
    v_mov_b32 v{V_NEG1+3}, -1
    v_mov_b32 v{V_P+5}, 0
    v_mov_b32 v{V_UP+1}, 0
    v_mov_b32 v{V_UP+3}, 0
    v_mov_b32 v{V_UP+5}, 0
    v_mov_b32 v{V_GP}, -1
    v_mov_b32 v{V_GP+1}, -1
    v_mov_b32 v{V_GP+2}, -1
    v_mov_b32 v{V_GP+3}, -1
    v_mov_b32 v{V_MP}, -1
    v_mov_b32 v{V_MP+1}, -1
    v_bfe_u32 v{V_HALF}, v{V_LANE}, 3, 1
    v_bfe_u32 v{V_CAN}, v{V_LANE}, 2, 2            ; q = (lane>>2)&3
    s_cmp_eq_u32 s{R_WAVE}, 0
    s_cselect_b32 s{R_T}, 3, 2
    v_min_u32 v{V_CAN}, s{R_T}, v{V_CAN}
    v_mul_u32_u24 v{V_CAN}, 3072, v{V_CAN}
    v_and_b32 v{V_CK}, 3, v{V_LANE}
    v_lshl_add_u32 v{V_CAN}, v{V_CK}, 8, v{V_CAN}
    s_lshl_b32 s{R_T}, s{R_WAVE}, 10
    s_add_u32 s{R_T}, s{R_T}, 4
    v_add_u32 v{V_CAN}, s{R_T}, v{V_CAN}
    v_mov_b32 v{V_ONE}, 0x3f803f80
    v_mov_b32 v{V_ONE+1}, 0x3f803f80
    v_mov_b32 v{V_ONE+2}, 0x3f803f80
    v_mov_b32 v{V_ONE+3}, 0x3f803f80
    s_mul_i32 s{R_SST}, s{R_I}, 1280
    s_add_u32 s{R_SST}, s{R_SST}, {XL_S}
    s_cmp_eq_u32 s{R_WAVE}, 1
    s_cselect_b32 s{R_T}, 256, 0
    s_cmp_eq_u32 s{R_WAVE}, 2
    s_cselect_b32 s{R_T}, 768, s{R_T}
    s_add_u32 s{R_SST}, s{R_SST}, s{R_T}
    s_lshr_b32 s{R_T}, s{R_I}, 2
    s_mul_i32 s{R_VO}, s{R_T}, 3072
    s_mul_i32 s{R_T}, s{R_JJ}, 768
    s_add_u32 s{R_VO}, s{R_VO}, s{R_T}
    s_add_u32 s{R_VO}, s{R_VO}, {XL_V}
    s_lshl_b32 s{R_MST}, s{R_CT}, 8
    s_cmp_eq_u32 s{R_WAVE}, 2
    s_cselect_b32 s{R_CTW}, s{R_CT2}, s{R_CT}
    s_mov_b32 s{R_CSC}, 0x3dd53b95
    s_min_u32 s{R_T}, s{R_WAVE}, 2
    s_lshl_b32 s{R_T2}, s{R_T}, 10
    v_add_u32 v{V_UXA}, s{R_T2}, v{V_LIN}
    s_lshl_b32 s{R_T2}, s{R_T}, 9
    v_add_u32 v{V_KXA}, s{R_T2}, v{V_TRK}
    s_mul_i32 s{R_SI}, s{R_I}, 1280
    s_add_u32 s{R_SI}, s{R_SI}, {XL_S}
    v_lshrrev_b32 v{V_UG}, 4, v{V_LANE}
    v_mul_u32_u24 v{V_UG}, 655360, v{V_UG}
    v_and_b32 v{V_T0}, 15, v{V_LANE}
    v_lshl_add_u32 v{V_UG}, v{V_T0}, 4, v{V_UG}
    v_mov_b32 v{V_KXL}, v{V_KXO}
    ''')

def rec_load_weights(a, P_WQ,P_WK,P_WV,P_WO):
    VO=V_A
    TRQ=V_RD; TRO=V_RD+1; WOG=V_RD+3; TMP=40
    RING=0; SLOT=18432; WOB=4*SLOT
    a(f'''
    v_and_b32 v{V_T0}, 15, v{V_LANE}
    v_lshrrev_b32 v{V_T1}, 4, v{V_LANE}
    v_lshrrev_b32 v{V_T2}, 2, v{V_T0}
    v_and_b32 v{V_T0}, 3, v{V_T0}
    v_lshlrev_b32 v{V_T0}, 3, v{V_T0}
    v_lshrrev_b32 v{V_T3}, 1, v{V_T1}
    v_lshlrev_b32 v{V_T3}, 4, v{V_T3}
    v_and_b32 v{TRQ}, 1, v{V_T1}
    v_lshl_add_u32 v{V_T3}, v{TRQ}, 2, v{V_T3}
    v_add_u32 v{V_T3}, v{V_T3}, v{V_T2}
    v_mul_u32_u24 v{TRQ}, 96, v{V_T3}
    v_add_u32 v{TRQ}, v{TRQ}, v{V_T0}
    v_lshl_add_u32 v{TRO}, v{V_T3}, 5, v{V_T0}
    s_mul_i32 s{R_T3}, s{R_WAVE}, 18432
    s_add_u32 s{R_T3}, s{R_T3}, {WOB}
    v_add_u32 v{TRO}, s{R_T3}, v{TRO}
    v_lshrrev_b32 v{V_T0}, 1, v{V_LANE}
    v_and_b32 v{V_T1}, 1, v{V_LANE}
    v_lshlrev_b32 v{V_T1}, 4, v{V_T1}
    v_mul_u32_u24 v{WOG}, 1280, v{V_T0}
    v_add_u32 v{WOG}, v{WOG}, v{V_T1}
    ''')
    for n in range(6):
        a(f'''
        v_add_u32 v{V_T0}, {64*n}, v{V_LANE}
        v_mul_u32_u24 v{V_T1}, 10923, v{V_T0}
        v_lshrrev_b32 v{V_T1}, 16, v{V_T1}
        v_mul_u32_u24 v{V_T2}, 6, v{V_T1}
        v_sub_u32 v{V_T2}, v{V_T0}, v{V_T2}
        v_mul_u32_u24 v{V_T1}, 12288, v{V_T1}
        v_lshl_add_u32 v{VO+n}, v{V_T2}, 4, v{V_T1}
        ''')
    L3=a.lab('W3'); LJ=a.lab('WJ')
    a(f'''
    s_mov_b32 s32, s{P_WQ}
    s_mov_b32 s33, s{P_WQ+1}
    s_cmp_eq_u32 s{R_WAVE}, 1
    s_cselect_b32 s32, s{P_WK}, s32
    s_cselect_b32 s33, s{P_WK+1}, s33
    s_cmp_eq_u32 s{R_WAVE}, 2
    s_cselect_b32 s32, s{P_WV}, s32
    s_cselect_b32 s33, s{P_WV+1}, s33
    s_cmp_eq_u32 s{R_WAVE}, 3
    s_cselect_b32 s32, s{P_WO}, s32
    s_cselect_b32 s33, s{P_WO+1}, s33
    s_mov_b32 s34, {640*6144*2}
    s_mov_b32 s35, 0x20000
    s_mul_i32 s{R_T}, s{R_H}, 384
    s_mul_i32 s{R_T2}, s{R_JJ}, 96
    s_add_u32 s74, s{R_T}, s{R_T2}
    s_mul_i32 s75, s{R_WAVE}, 6144
    s_cmp_eq_u32 s{R_WAVE}, 3
    s_cbranch_scc1 {L3}
    ''')
    def chunk_dma(c):
        for n in range(6):
            a(f's_add_u32 m0, s75, {RING+(c%4)*SLOT+n*1024}\ns_nop 0\nbuffer_load_dwordx4 v{VO+n}, {SRD_A}, s74 offen lds')
        a(f's_add_u32 s74, s74, {64*12288}')
    for c in range(4): chunk_dma(c)
    a(f's_branch {LJ}\n{L3}:')
    for w in range(4):
        a(f'''
        s_lshl_b32 s{R_T}, s{R_G}, 2
        s_add_u32 s{R_T}, s{R_T}, {w}
        s_mul_i32 s{R_T}, s{R_T}, {192*1280}
        ''')
        for ctk,CT in enumerate((R_CT0,R_CT1,R_CT2)):
            a(f's_lshl_b32 s{R_T2}, s{CT}, 5\ns_add_u32 s{R_T2}, s{R_T2}, s{R_T}')
            for n in range(6):
                a(f'''
                s_mov_b32 m0, {WOB+w*18432+ctk*6144+n*1024}
                s_add_u32 s70, s{R_T2}, {n*32*1280}
                buffer_load_dwordx4 v{WOG}, {SRD_A}, s70 offen lds
                ''')
    a(f'{LJ}:')
    def unpack_step(addr, off, dstfn):
        for hb in range(2):
            o=off+hb*32*96
            a(f'ds_read_b64_tr_b16 v[{TMP+4*hb}:{TMP+4*hb+1}], v{addr} offset:{o}')
            a(f'ds_read_b64_tr_b16 v[{TMP+4*hb+2}:{TMP+4*hb+3}], v{addr} offset:{o+8*96}')
    def wr(t0,dstfn):
        for hb in range(2):
            t=t0+4*hb
            for k,src in enumerate((t,t+2,t+1,t+3)): a(dstfn(4*hb+k,src))
    a(f'''
    s_lshl_b32 s{R_T2}, s{R_WAVE}, 5
    v_add_u32 v{V_RD+2}, s{R_T2}, v{TRQ}
    v_add_u32 v{V_RD+4}, {2*SLOT}, v{V_RD+2}
    v_add_u32 v{V_RD+5}, {2*SLOT}, v{TRQ}
    ''')
    for c in range(10):
        LA=a.lab('UA'); LB=a.lab('UB')
        inflight=min(c+4,10)-c-1
        a(f's_cmp_eq_u32 s{R_WAVE}, 3\ns_cbranch_scc1 {LA}\ns_waitcnt vmcnt({6*inflight})\n{LA}:\ns_barrier')
        so=RING+(c%2)*SLOT; AQ=(V_RD+2) if (c%4)<2 else (V_RD+4); AV=TRQ if (c%4)<2 else (V_RD+5)
        a(f's_cmp_eq_u32 s{R_WAVE}, 3\ns_cbranch_scc1 {LB}')
        for hb in range(2):
            o=so+hb*32*96
            a(f'ds_read_b64_tr_b16 v[{TMP+4*hb}:{TMP+4*hb+1}], v{AQ} offset:{o}')
            a(f'ds_read_b64_tr_b16 v[{TMP+4*hb+2}:{TMP+4*hb+3}], v{AQ} offset:{o+8*96}')
        for hb in range(2):
            o=so+6144+hb*32*96
            a(f'ds_read_b64_tr_b16 v[{TMP+8+4*hb}:{TMP+8+4*hb+1}], v{AQ} offset:{o}')
            a(f'ds_read_b64_tr_b16 v[{TMP+8+4*hb+2}:{TMP+8+4*hb+3}], v{AQ} offset:{o+8*96}')
        a('s_waitcnt lgkmcnt(0)')
        wr(TMP,lambda k,src: f'v_accvgpr_write_b32 a{wqk(0,c)+k}, v{src}')
        wr(TMP+8,lambda k,src: f'v_accvgpr_write_b32 a{wqk(1,c)+k}, v{src}')
        LE=a.lab('UE')
        a(f's_branch {LE}\n{LB}:')
        for t in range(3):
            for hb in range(2):
                o=so+2*6144+t*32+hb*32*96
                a(f'ds_read_b64_tr_b16 v[{TMP+8*(t&1)+4*hb}:{TMP+8*(t&1)+4*hb+1}], v{AV} offset:{o}')
                a(f'ds_read_b64_tr_b16 v[{TMP+8*(t&1)+4*hb+2}:{TMP+8*(t&1)+4*hb+3}], v{AV} offset:{o+8*96}')
            a('s_waitcnt lgkmcnt(0)')
            wr(TMP+8*(t&1),lambda k,src,t=t: f'v_accvgpr_write_b32 a{wqk(t,c)+k}, v{src}')
        a(f'{LE}:\ns_barrier')
        if c+4<10:
            LN=a.lab('UN')
            a(f's_cmp_eq_u32 s{R_WAVE}, 3\ns_cbranch_scc1 {LN}')
            chunk_dma(c+4)
            a(f'{LN}:')
    if WHOOK: WHOOK(30)
    a('s_waitcnt vmcnt(0)\ns_barrier')
    for ctk in range(3):
        for st in range(3):
            for hb in range(2):
                o=ctk*6144+(st*64+hb*32)*32
                a(f'ds_read_b64_tr_b16 v[{TMP+4*hb}:{TMP+4*hb+1}], v{TRO} offset:{o}')
                a(f'ds_read_b64_tr_b16 v[{TMP+4*hb+2}:{TMP+4*hb+3}], v{TRO} offset:{o+8*32}')
            a('s_waitcnt lgkmcnt(0)')
            wr(TMP,lambda k,src,c=ctk,st=st: f'v_mov_b32 v{wo(c,st)+k}, v{src}')
    a('s_barrier')

def slot_regs(a):
    for k,reg in enumerate((R_SL0,R_SL1,R_SL2,R_SL3)):
        a(f'''
        s_add_u32 s{R_T}, s{R_STEP}, {k}
        s_and_b32 s{R_T}, s{R_T}, 3
        s_mul_i32 s{R_T}, s{R_T}, {XL_SLOT}
        s_add_u32 s{reg}, s{R_T}, s{R_XLB}
        ''')
    a(f'''
    s_and_b32 s{R_T}, s{R_STEP}, 3
    s_mul_i32 s{R_SG0}, s{R_T}, {XG_SLOT}
    s_add_u32 s{R_SG0}, s{R_SG0}, {WS_XG}
    s_xor_b32 s{R_T}, s{R_T}, 2
    s_mul_i32 s{R_SG2}, s{R_T}, {XG_SLOT}
    s_add_u32 s{R_SG2}, s{R_SG2}, {WS_XG}
    ''')

def step_voffs(a):
    a(f'''
    s_sub_u32 s{R_T}, s{R_SG2}, s{R_SG0}
    v_mad_i32_i24 v{V_SPG}, v{V_HALF}, s{R_T}, v{V_SP}
    v_add_u32 v{V_SPG}, s{R_SG0}, v{V_SPG}
    s_sub_u32 s{R_T}, s{R_SL3}, s{R_SL1}
    v_mad_i32_i24 v{V_MSG}, v{V_HALF}, s{R_T}, v{V_MST}
    v_add_u32 v{V_MSG}, s{R_SL1}, v{V_MSG}
    ''')
def publish_ST(a, data, slot, flags):
    a(f'''
    s_add_u32 s{R_T}, s{slot}, s{R_SST}
    s_mov_b64 exec, s[{R_MLO}:{R_MHI}]
    buffer_store_dwordx4 v[{data}:{data+3}], v{V_SP}, {SRD_WS}, s{R_T} offen {flags}
    s_mov_b64 exec, -1
    ''')
def publish_SM(a, data, slot, flags):
    a(f'''
    s_add_u32 s{R_T}, s{slot}, s{R_SST}
    s_mov_b64 exec, s[{R_MLO}:{R_MHI}]
    buffer_store_dwordx2 v[{data}:{data+1}], v{V_SPM}, {SRD_WS}, s{R_T} offen {flags}
    s_mov_b64 exec, -1
    ''')
def publish_V(a, datas, slot, flags):
    a(f'''
    s_add_u32 s{R_T}, s{R_VO}, s{slot}
    s_mov_b64 exec, s[{R_MLO}:{R_MHI}]
    ''')
    for t in range(3):
        a(f'buffer_store_dwordx2 v[{datas[t]}:{datas[t]+1}], v{V_MST}, {SRD_WS}, s{R_T} offen offset:{t*256} {flags}')
    a('s_mov_b64 exec, -1')
def publish_G(a, data, sg):
    a(f'''
    s_add_u32 s{R_T}, s{sg}, s{R_GST}
    s_mov_b64 exec, s[{R_MLO}:{R_MHI}]
    buffer_store_dwordx4 v[{data}:{data+3}], v{V_SP}, {SRD_WS}, s{R_T} offen sc1
    s_mov_b64 exec, -1
    ''')
def publish_M(a, data, slot, flags):
    a(f'''
    s_add_u32 s{R_T}, s{slot}, s{R_MST}
    s_mov_b64 exec, s[{R_MLO}:{R_MHI}]
    buffer_store_dwordx2 v[{data}:{data+1}], v{V_MST}, {SRD_WS}, s{R_T} offen {flags}
    s_mov_b64 exec, -1
    ''')
def resets(a, sS, sV, sG, sM):
    N=V_NEG1
    a(f"""
    s_mov_b64 exec, s[{R_MLO}:{R_MHI}]
    s_add_u32 s{R_T}, s{sS}, s{R_SI}
    buffer_store_dwordx2 v[{N}:{N+1}], v{V_SPM}, {SRD_WS}, s{R_T} offen {LOC}
    buffer_store_dwordx4 v[{N}:{N+3}], v{V_SP}, {SRD_WS}, s{R_T} offen offset:256 {LOC}
    buffer_store_dwordx4 v[{N}:{N+3}], v{V_SP}, {SRD_WS}, s{R_T} offen offset:768 {LOC}
    s_add_u32 s{R_T}, s{R_VO}, s{sV}
    """)
    for t in range(3):
        a(f'buffer_store_dwordx2 v[{N}:{N+1}], v{V_MST}, {SRD_WS}, s{R_T} offen offset:{t*256} {LOC}')
    for CT,RG in ((R_CT0,R_G0),(R_CT1,R_G1),(R_CT2,R_G2)):
        a(f"""
        s_add_u32 s{R_T}, s{sG}, s{RG}
        buffer_store_dwordx4 v[{N}:{N+3}], v{V_SP}, {SRD_WS}, s{R_T} offen sc1
        s_lshl_b32 s{R_T}, s{CT}, 8
        s_add_u32 s{R_T}, s{R_T}, s{sM}
        buffer_store_dwordx2 v[{N}:{N+1}], v{V_MST}, {SRD_WS}, s{R_T} offen {LOC}
        """)
    a('s_mov_b64 exec, -1')
def pf_groups(ldf, ldsbase, blocks):
    out=[]
    for b in blocks:
        if b<12:
            w,k=divmod(b,3); CT=(R_CT0,R_CT1,R_CT2)[k]
            out.append([f's_lshl_b32 s{R_T}, s{CT}, 16', f's_add_u32 s{R_T}, s{R_T}, s{R_CXO}', f's_add_u32 s{R_T}, s{R_T}, {w*40*65536}',
                        f's_add_u32 m0, s{ldsbase}, {b*1024}', 's_nop 0',
                        f'buffer_load_dwordx4 v{V_CO}, {SRD_WS}, s{R_T} offen {ldf} lds'])
        else:
            t=b-12
            out.append([f's_add_u32 m0, s{ldsbase}, {b*1024}', f's_add_u32 s{R_T}, s{R_KX}, {t*65536}',
                        f'buffer_load_dwordx4 v{V_LIN}, {SRD_WS}, s{R_T} offen {ldf} lds'])
    return out
def pf_advance(a):
    if not NOADV: a(f"""
    s_add_u32 s{R_KX}, s{R_KX}, 1024
    s_add_u32 s{R_CXO}, s{R_CXO}, 1024
    """)
R_PFN=83
R_PFM=3; R_PFKM=70
R_UW=20; R_KW=21; R_CTW=24; R_KMB=25
PFB=[[0,1,2,3,4],[5,6,7,8,9],[10,11,12,13,14]]
LDS_FLAG=31744
R_PFC=23
R_PFK=22

def progress(a, val):
    a(f"""
    s_lshl_b32 s{R_T}, s{R_G}, 4
    s_add_u32 s{R_T}, s{R_T}, s{R_I}
    s_lshl_b32 s{R_T}, s{R_T}, 8
    s_add_u32 s{R_T}, s{R_T}, {WS_PROG}
    v_mov_b32 v{V_T0}, {val}
    s_mov_b64 exec, 1
    buffer_store_dword v{V_T0}, off, {SRD_WS}, s{R_T} sc1
    s_mov_b64 exec, -1
    """)
def kvc_wait(a, big=False, off=None, thr='64'):
    L=a.lab('KW'); D=a.lab('KD')
    if off is None: a(f's_lshl_b32 s{R_T2}, s{R_T2}, 2\ns_add_u32 s{R_T2}, s{R_T2}, 96')
    else: a(f's_mov_b32 s{R_T2}, {off}')
    a(f"""
    s_mov_b32 s{R_T}, 2000000
    {L}:
    buffer_load_dword v{V_T0}, off, s[44:47], s{R_T2} sc1
    s_waitcnt vmcnt(0)
    v_cmp_gt_u32 vcc, {thr}, v{V_T0}
    s_cbranch_vccz {D}
    s_sleep 8
    s_sub_u32 s{R_T}, s{R_T}, 1
    s_cbranch_scc0 {L}
    {D}:
    """)
def rec_main(a, P_MEM, ldf='', SFX='', slow=False):
    a(f"""
    s_mul_i32 s{R_XLB}, s{R_G}, {XL_GRP}
    s_add_u32 s{R_XLB}, s{R_XLB}, {WS_XL}
    """)
    if slow:
        a(f's_mov_b32 s{R_PAR}, 0')
    else:
        LW=a.lab('PW')
        a(f"""
        s_mov_b32 s{R_T}, 68
        {LW}:
        buffer_load_dword v{V_T0}, off, s[44:47], s{R_T} sc1
        s_waitcnt vmcnt(0)
        v_cmp_eq_u32 vcc, 0, v{V_T0}
        """)
        poll_tail_sleep(a,LW)
        a(f"""
        v_readfirstlane_b32 s{R_PAR}, v{V_T0}
        s_nop 3
        s_max_u32 s{R_PAR}, s{R_PAR}, 1
        s_sub_u32 s{R_PAR}, s{R_PAR}, 1
        s_xor_b32 s{R_PAR}, s{R_PAR}, {PARX}
        """)
    g_offsets(a)
    LNI=a.lab('NI')
    a(f's_cmp_eq_u32 s{R_WAVE}, 3\ns_cbranch_scc0 {LNI}')
    for k in range(4):
        a(f"""
        s_mov_b32 s93, s{R_XLB}
        s_add_u32 s93, s93, {k*XL_SLOT}
        s_mov_b32 s94, {WS_XG+k*XG_SLOT}
        """)
        resets(a,93,93,94,93)
    if FUSED:
        progress(a,'0')
        LZ=a.lab('ZF')
        a(f"""
        s_lshl_b32 s{R_T}, s{R_G}, 4
        s_add_u32 s{R_T}, s{R_T}, s{R_I}
        s_cmp_lt_u32 s{R_T}, 64
        s_cbranch_scc0 {LZ}
        s_lshl_b32 s{R_T}, s{R_T}, 8
        s_add_u32 s{R_T}, s{R_T}, {WS_FPD}
        v_mov_b32 v{V_T0}, 0
        s_mov_b64 exec, 1
        buffer_store_dword v{V_T0}, off, {SRD_WS}, s{R_T} sc1
        s_mov_b64 exec, -1
        {LZ}:
        """)
    a(f'{LNI}:')
    a('s_waitcnt vmcnt(0)\ns_barrier')
    LW=a.lab('SB'); LX=a.lab('SBX')
    a(f"""
    s_cmp_eq_u32 s{R_WAVE}, 0
    s_cbranch_scc0 {LX}
    s_mov_b64 exec, 1
    v_mov_b32 v{V_T0}, 1
    s_mov_b32 s{R_T}, {64}
    buffer_atomic_add v{V_T0}, off, s[44:47], s{R_T}
    {LW}:
    buffer_load_dword v{V_T0}, off, s[44:47], s{R_T} sc1
    s_waitcnt vmcnt(0)
    v_cmp_gt_u32 vcc, 128, v{V_T0}
    """)
    poll_tail_sleep(a,LW)
    a(f"""
    s_mov_b64 exec, -1
    {LX}:
    s_barrier
    """)
    a(f"""
    s_mul_i32 s{R_T}, s{R_H}, 12
    s_mul_i32 s{R_T2}, s{R_JJ}, 3
    s_add_u32 s{R_T}, s{R_T}, s{R_T2}
    s_lshl_b32 s{R_KX}, s{R_T}, 16
    s_add_u32 s{R_KX}, s{R_KX}, {WS_KX}
    s_lshl_b32 s{R_KM}, s{R_T}, 14
    s_add_u32 s{R_KM}, s{R_KM}, {WS_KM}
    s_lshl_b32 s{R_T}, s{R_G}, 2
    s_mul_i32 s{R_CXO}, s{R_T}, {40*65536}
    s_add_u32 s{R_CXO}, s{R_CXO}, {WS_CX}
    s_mul_i32 s{R_UM}, s{R_T}, {40*16384}
    s_add_u32 s{R_UM}, s{R_UM}, {WS_UM}
    s_mov_b32 s{R_STEP}, 0
    """)
    LNI=a.lab('NI')
    a(f's_cmp_eq_u32 s{R_WAVE}, 3\ns_cbranch_scc0 {LNI}')
    if FUSED:
        kvc_wait(a, off=172, thr='64')
    a(f's_mov_b32 s93, {LDS_PF}')
    for g in pf_groups(ldf,93,range(15)):
        for x in g: a(x)
    a(f'{LNI}:')
    pf_advance(a)
    MB=V_RD
    a(f"""
    s_mov_b32 s32, s{P_MEM}
    s_mov_b32 s33, s{P_MEM+1}
    s_mov_b32 s34, 10240
    s_mov_b32 s35, 0x20000
    v_bfe_u32 v{V_T0}, v{V_LANE}, 1, 3
    v_mul_u32_u24 v{V_T0}, 1280, v{V_T0}
    v_lshrrev_b32 v{V_T1}, 4, v{V_LANE}
    v_lshl_add_u32 v{V_T0}, v{V_T1}, 5, v{V_T0}
    v_and_b32 v{V_T1}, 1, v{V_LANE}
    v_lshl_add_u32 v{V_T0}, v{V_T1}, 4, v{V_T0}
    s_lshl_b32 s{R_T}, s{R_WAVE}, 7
    """)
    for q in range(3):
        a(f'buffer_load_dwordx4 v[{MB+4*q}:{MB+4*q+3}], v{V_T0}, {SRD_A}, s{R_T} offen offset:{q*512}')
    a(f'v_mov_b32 v{V_T2}, 0\nv_mov_b32 v{V_T3}, {LDS_FLAG}\nds_write_b32 v{V_T3}, v{V_T2}')
    a('s_waitcnt vmcnt(0) lgkmcnt(0)\ns_barrier')
    slot_regs(a)
    if TSHOOK: TSHOOK()
    if PROF:
        for k in range(8): a(f's_mov_b32 s{94+k}, 0')
        a('s_memtime s[72:73]\ns_waitcnt lgkmcnt(0)\ns_mov_b32 s71, s72')
    def prework():
        for i in range(12): a(f'v_mov_b32 v{V_D+i}, 0')
        a(f"""
        s_and_b32 s{R_PFL}, s{R_STEP}, 1
        s_mul_i32 s{R_PFL}, s{R_PFL}, 15360
        s_add_u32 s{R_PFL}, s{R_PFL}, {LDS_PF}
        s_xor_b32 s{R_PFN}, s{R_STEP}, 1
        s_and_b32 s{R_PFN}, s{R_PFN}, 1
        s_mul_i32 s{R_PFN}, s{R_PFN}, 15360
        s_add_u32 s{R_PFN}, s{R_PFN}, {LDS_PF}
        s_mul_i32 s{R_T}, s{R_WAVE}, 3072
        s_add_u32 s{R_T}, s{R_T}, s{R_PFL}
        v_add_u32 v{V_T2}, s{R_T}, v{V_LIN}
        v_add_u32 v{V_T3}, s{R_PFL}, v{V_KXL}
        s_lshl_b32 s{R_T}, s{R_CTW}, 14
        s_add_u32 s{R_UW}, s{R_T}, s{R_UM}
        s_sub_u32 s{R_UW}, s{R_UW}, 256
        s_lshl_b32 s{R_T}, s{R_WAVE}, 14
        s_add_u32 s{R_KW}, s{R_T}, s{R_KM}
        s_sub_u32 s{R_KW}, s{R_KW}, 256
        """)
    LNW=a.lab('NW')
    a(f"""
    ds_write_b128 v{V_LINW}, v[{MB}:{MB+3}] offset:{LDS_M}
    ds_write_b128 v{V_LINW}, v[{MB+4}:{MB+7}] offset:{LDS_M+4096}
    s_cmp_lt_u32 s{R_WAVE}, 2
    s_cbranch_scc0 {LNW}
    ds_write_b128 v{V_LINW}, v[{MB+8}:{MB+11}] offset:{LDS_M+8192}
    {LNW}:
    """)
    prework()
    a('s_waitcnt lgkmcnt(0)\ns_branch REC_BC\nREC_LOOP:')
    prework()
    LP=a.lab('PM'); LP0=a.lab('PM0')
    a(f"""
    s_add_u32 s{R_T2}, s{R_SL0}, 4096
    s_add_u32 s{R_T3}, s{R_SL0}, 8192
    """)
    if DELAY_M: a(f's_sleep {DELAY_M}')
    a(f"""
    s_cmp_lt_u32 s{R_WAVE}, 2
    s_cbranch_scc1 {LP0}
    {LP}:
    buffer_load_dwordx4 v[{MB}:{MB+3}], v{V_LINW}, {SRD_WS}, s{R_SL0} offen sc1
    buffer_load_dwordx4 v[{MB+4}:{MB+7}], v{V_LINW}, {SRD_WS}, s{R_T2} offen sc1
    s_waitcnt vmcnt(0)
    """)
    maxchain(a,[MB+1,MB+3,MB+5,MB+7])
    poll_tail(a,LP)
    pt(a,0)
    a(f"""
    ds_write_b128 v{V_LINW}, v[{MB}:{MB+3}] offset:{LDS_M}
    ds_write_b128 v{V_LINW}, v[{MB+4}:{MB+7}] offset:{LDS_M+4096}
    s_waitcnt lgkmcnt(0)
    s_branch REC_BC2
    {LP0}:
    buffer_load_dwordx4 v[{MB}:{MB+3}], v{V_LINW}, {SRD_WS}, s{R_SL0} offen sc1
    buffer_load_dwordx4 v[{MB+4}:{MB+7}], v{V_LINW}, {SRD_WS}, s{R_T2} offen sc1
    buffer_load_dwordx4 v[{MB+8}:{MB+11}], v{V_LINW}, {SRD_WS}, s{R_T3} offen sc1
    s_waitcnt vmcnt(0)
    """)
    maxchain(a,[MB+1,MB+3,MB+5,MB+7,MB+9,MB+11])
    poll_tail(a,LP0)
    pt(a,0)
    a(f"""
    ds_write_b128 v{V_LINW}, v[{MB}:{MB+3}] offset:{LDS_M}
    ds_write_b128 v{V_LINW}, v[{MB+4}:{MB+7}] offset:{LDS_M+4096}
    ds_write_b128 v{V_LINW}, v[{MB+8}:{MB+11}] offset:{LDS_M+8192}
    s_waitcnt lgkmcnt(0)
    s_branch REC_BC2
    REC_BC:
    """)
    pt(a,0)
    a('REC_BC2:\ns_barrier')
    pt(a,'bcast')
    a(f'ds_read_b128 v[{V_UX}:{V_UX+3}], v{V_UXA} offset:{LDS_U}')
    a(f'ds_read_b64_tr_b16 v[{V_KXX}:{V_KXX+1}], v{V_KXA}')
    for st in range(10): a(f'ds_read_b128 v[{V_A+4*st}:{V_A+4*st+3}], v{V_LIN} offset:{LDS_M+st*1024}')
    for k in range(3): a(f'ds_read_b128 v[{V_C+4*k}:{V_C+4*k+3}], v{V_T2} offset:{k*1024}')
    for t in range(3): a(f'ds_read_b64 v[{V_KX+2*t}:{V_KX+2*t+1}], v{V_T3} offset:{(12+t)*1024}')
    L3=a.lab('A3'); LJ=a.lab('AJ'); LV=a.lab('AV'); LX1=a.lab('AX'); LS=a.lab('AS'); LB=a.lab('AB')
    def smf(nt, groups=(), early_barrier=None):
        groups=list(groups); gi=0
        for st in range(10):
            a(f's_waitcnt lgkmcnt({15-st})')
            if st==1 and nt==2 and not NOST:
                LS0=a.lab('S0')
                a(f"""
                s_cmp_eq_u32 s{R_STEP}, 0
                s_cbranch_scc1 {LS0}
                buffer_store_dwordx4 v[{V_UX}:{V_UX+3}], v{V_UG}, {SRD_WS}, s{R_UW} offen {KM_FLAGS}
                s_mov_b64 exec, s[{R_KMLO}:{R_KMHI}]
                buffer_store_dwordx2 v[{V_KXX}:{V_KXX+1}], v{V_KMO}, {SRD_WS}, s{R_KW} offen {KM_FLAGS}
                s_mov_b64 exec, -1
                {LS0}:
                """)
            for t in range(nt):
                r=wqk(t,st)
                a(f'v_smfmac_f32_16x16x64_bf16 v[{V_D+4*t}:{V_D+4*t+3}], v[{V_A+4*st}:{V_A+4*st+3}], a[{r}:{r+7}], v{V_IDX}')
            if early_barrier is not None and st==early_barrier-1: a('s_barrier')
            while gi<len(groups) and gi<((st+1)*len(groups)+9)//10 and st>=1:
                for x in groups[gi]: a(x)
                gi+=1
        assert gi==len(groups)
    def fold(nt, base):
        for t in range(nt):
            d=base+4*t
            a(f'v_add_f32 v{d}, v{d}, v{d+1}\nv_add_f32 v{d+2}, v{d+2}, v{d+3}')
    def u_groups():
        g=[]
        for k,CT in enumerate((R_CT0,R_CT1,R_CT2)):
            g.append([f's_lshl_b32 s{R_T}, s{CT}, 14', f's_add_u32 s{R_T}, s{R_T}, s{R_UW}',
                      f'buffer_store_dword v{V_UP+2*k}, v{V_UO}, {SRD_WS}, s{R_T} offen {KM_FLAGS}'])
        return g
    N=V_NEG1
    mlo=f's_mov_b64 exec, s[{R_MLO}:{R_MHI}]'; full='s_mov_b64 exec, -1'
    def km_groups():
        return [[f's_add_u32 s{R_T}, s{R_KW}, {t*16384}', f's_mov_b64 exec, s[{R_KMLO}:{R_KMHI}]',
                 f'buffer_store_dwordx2 v[{V_K+2*t}:{V_K+2*t+1}], v{V_KMO}, {SRD_WS}, s{R_T} offen {KM_FLAGS}', full] for t in range(3)]
    def rs_S():
        return [[f's_add_u32 s{R_T}, s{R_SL2}, s{R_SI}', mlo, f'buffer_store_dwordx2 v[{N}:{N+1}], v{V_SPM}, {SRD_WS}, s{R_T} offen {LOC}',
                 f'buffer_store_dwordx4 v[{N}:{N+3}], v{V_SP}, {SRD_WS}, s{R_T} offen offset:256 {LOC}', full],
                [f's_add_u32 s{R_T}, s{R_SL2}, s{R_SI}', mlo, f'buffer_store_dwordx4 v[{N}:{N+3}], v{V_SP}, {SRD_WS}, s{R_T} offen offset:768 {LOC}', full]]
    def rs_V():
        return [[f's_add_u32 s{R_T}, s{R_VO}, s{R_SL2}', mlo]+[f'buffer_store_dwordx2 v[{N}:{N+1}], v{V_MST}, {SRD_WS}, s{R_T} offen offset:{t*256} {LOC}' for t in range(3)]+[full]]
    def rs_GM(which):
        CT,RG=((R_CT0,R_G0),(R_CT1,R_G1),(R_CT2,R_G2))[which]
        return [[f's_add_u32 s{R_T}, s{R_SG2}, s{RG}', mlo, f'buffer_store_dwordx4 v[{N}:{N+3}], v{V_SP}, {SRD_WS}, s{R_T} offen sc1', full],
                [f's_lshl_b32 s{R_T}, s{CT}, 8', f's_add_u32 s{R_T}, s{R_T}, s{R_SL3}', mlo,
                 f'buffer_store_dwordx2 v[{N}:{N+1}], v{V_MST}, {SRD_WS}, s{R_T} offen {LOC}', full]]
    rsm=[[f's_add_u32 s{R_T}, s{R_SL2}, s{R_SI}', mlo, f'buffer_store_dwordx2 v[{N}:{N+1}], v{V_SPM}, {SRD_WS}, s{R_T} offen {LOC}', full]]
    rst=[[f's_add_u32 s{R_T}, s{R_SL2}, s{R_SST}', mlo, f'buffer_store_dwordx4 v[{N}:{N+3}], v{V_SP}, {SRD_WS}, s{R_T} offen {LOC}', full]]
    rsv=[[f's_add_u32 s{R_T}, s{R_VO}, s{R_SL2}', 's_mov_b32 exec_hi, 0xffff', f'buffer_store_dwordx4 v[{N}:{N+3}], v{V_LIN}, {SRD_WS}, s{R_T} offen {LOC}', full]]
    WG=[rsm, rst, rst, rsv]
    LA=[a.lab('PA') for _ in range(3)]; LAE=a.lab('PAE')
    a(f's_cmp_eq_u32 s{R_WAVE}, 3\ns_cbranch_scc1 {L3}')
    smf(2)
    pt(a,'smf')
    a(f"""
    s_lshl_b32 s{R_T}, s{R_WAVE}, 8
    v_add_u32 v{V_T0}, s{R_T}, v{V_TW}
    s_lshl_b32 s{R_T}, s{R_WAVE}, 9
    v_add_u32 v{V_T1}, s{R_T}, v{V_TWK}
    s_nop 2
    """)
    fold(2,V_D)
    a(f"""
    v_cvt_pk_bf16_f32 v{V_D}, v{V_D}, v{V_D+2}
    v_cvt_pk_bf16_f32 v{V_D+4}, v{V_D+4}, v{V_D+6}
    ds_write_b32 v{V_T0}, v{V_D}
    ds_write_b32 v{V_T1}, v{V_D+4}
    s_branch {LJ}
    {L3}:
    """)
    smf(3, early_barrier=(EB if EARLYB else None))
    pt(a,'smf')
    a('s_nop 6')
    fold(3,V_D)
    for t in range(3): a(f'v_cvt_pk_bf16_f32 v{V_D+4*t}, v{V_D+4*t}, v{V_D+4*t+2}')
    for t in range(3): a(f'ds_write_b32 v{V_TW}, v{V_D+4*t} offset:{768+t*256}')
    a(f's_waitcnt lgkmcnt(0)')
    if not EARLYB: a('s_barrier')
    a(f's_branch {LV}')
    a(f'{LJ}:')
    a('s_waitcnt lgkmcnt(0)\ns_barrier')
    pt(a,1)
    for t in range(3): a(f'ds_read_b64_tr_b16 v[{V_Q+2*t}:{V_Q+2*t+1}], v{V_TR} offset:{t*256}')
    a(f's_cmp_eq_u32 s{R_WAVE}, 0\ns_cbranch_scc0 {LX1}')
    for t in range(3): a(f'ds_read_b64_tr_b16 v[{V_K+2*t}:{V_K+2*t+1}], v{V_TRK} offset:{t*512}')
    a('s_waitcnt lgkmcnt(0)')
    for t in range(3):
        c='0' if t==0 else f'v[{V_SO}:{V_SO+3}]'
        a(f'v_mfma_f32_16x16x16_bf16 v[{V_SO}:{V_SO+3}], v[{V_K+2*t}:{V_K+2*t+1}], v[{V_Q+2*t}:{V_Q+2*t+1}], {c}')
    for i in range(7): a(f'v_mov_b32 v{V_U+i}, 0')
    publish_SM(a,V_SO,R_SL0,LOC)
    for i in range(7,12): a(f'v_mov_b32 v{V_U+i}, 0')
    for g in WG[0]:
        for x in g: a(x)
    a(f's_branch {LB}\n{LX1}:')
    a('s_waitcnt lgkmcnt(0)')
    for t in range(3):
        c='0' if t==0 else f'v[{V_SO}:{V_SO+3}]'
        a(f'v_mfma_f32_16x16x16_bf16 v[{V_SO}:{V_SO+3}], v[{V_KX+2*t}:{V_KX+2*t+1}], v[{V_Q+2*t}:{V_Q+2*t+1}], {c}')
    for i in range(7): a(f'v_mov_b32 v{V_U+i}, 0')
    publish_ST(a,V_SO,R_SL0,LOC)
    for i in range(7,12): a(f'v_mov_b32 v{V_U+i}, 0')
    LW2=a.lab('W2'); LW1=a.lab('W1')
    a(f's_cmp_eq_u32 s{R_WAVE}, 2\ns_cbranch_scc1 {LW2}')
    for g in WG[1]:
        for x in g: a(x)
    a(f's_branch {LW1}\n{LW2}:')
    for g in WG[2]:
        for x in g: a(x)
    a(f'{LW1}:')
    a(f's_branch {LB}\n{LV}:')
    for t in range(3): a(f'ds_read_b64_tr_b16 v[{V_Q+2*t}:{V_Q+2*t+1}], v{V_TR} offset:{768+t*256}')
    a('s_waitcnt lgkmcnt(0)')
    if PROF: pt(a,1)
    publish_V(a,[V_Q,V_Q+2,V_Q+4],R_SL0,LOC)
    for i in range(12): a(f'v_mov_b32 v{V_U+i}, 0')
    for g in WG[3]:
        for x in g: a(x)
    a(f'{LB}:')
    pt(a,2)
    LP=a.lab('PS')
    a(f"""
    s_mul_i32 s{R_T2}, s{R_WAVE}, 3072
    s_add_u32 s{R_T2}, s{R_T2}, {XL_V}
    s_add_u32 s{R_T2}, s{R_T2}, s{R_SL0}
    s_mul_i32 s{R_T}, s{R_WAVE}, {40*65536}
    s_add_u32 s{R_PFC}, s{R_T}, s{R_CXO}
    s_mul_i32 s{R_T}, s{R_WAVE}, 3072
    s_add_u32 s{R_PFM}, s{R_T}, s{R_PFN}
    s_min_u32 s{R_T}, s{R_WAVE}, 2
    s_lshl_b32 s{R_PFK}, s{R_T}, 16
    s_add_u32 s{R_PFK}, s{R_PFK}, s{R_KX}
    s_lshl_b32 s{R_T}, s{R_T}, 10
    s_add_u32 s{R_PFKM}, s{R_T}, s{R_PFN}
    s_add_u32 s{R_PFKM}, s{R_PFKM}, {12*1024}
    s_cmp_eq_u32 s{R_STEP}, 63
    s_cbranch_scc1 REC_LAST
    """)
    step_voffs(a)
    if DELAY_S: a(f's_sleep {DELAY_S}')
    a(f'{LP}:')
    SR=V_SR; SM=V_SM
    for st in range(3):
        a(f'buffer_load_dwordx4 v[{V_VF+4*st}:{V_VF+4*st+3}], v{V_LIN}, {SRD_WS}, s{R_T2} offen offset:{st*1024} sc1')
    for p in range(4):
        a(f'buffer_load_dwordx4 v[{SR+4*p}:{SR+4*p+3}], v{V_SLD}, {SRD_WS}, s{R_SL0} offen offset:{p*1280} sc1')
        a(f'buffer_load_dword v{SM+p}, v{V_SLDM}, {SRD_WS}, s{R_SL0} offen offset:{p*1280} sc1')
    a('s_waitcnt vmcnt(0)')
    f=V_VF
    maxchain(a,[f+1,f+3,f+5,f+7,f+9,f+11,SR,SR+4,SR+8,SR+12,SM,SM+1,SM+2,SM+3])
    poll_tail(a,LP)
    pt(a,3)
    um=[]
    for st in range(3):
        for k in range(3):
            d=V_U+4*k
            um.append(f'v_smfmac_f32_16x16x64_bf16 v[{d}:{d+3}], v[{V_VF+4*st}:{V_VF+4*st+3}], v[{wo(k,st)}:{wo(k,st)+7}], v{V_IDX}')
    E=V_E
    sm=[f'v_pk_add_f32 v[{SR}:{SR+1}], v[{SR}:{SR+1}], v[{SR+4}:{SR+5}]',
        f'v_pk_add_f32 v[{SR+2}:{SR+3}], v[{SR+2}:{SR+3}], v[{SR+6}:{SR+7}]',
        f'v_pk_add_f32 v[{SR+8}:{SR+9}], v[{SR+8}:{SR+9}], v[{SR+12}:{SR+13}]',
        f'v_pk_add_f32 v[{SR+10}:{SR+11}], v[{SR+10}:{SR+11}], v[{SR+14}:{SR+15}]',
        f'v_pk_add_f32 v[{SM}:{SM+1}], v[{SM}:{SM+1}], v[{SM+2}:{SM+3}]',
        f'v_pk_add_f32 v[{E}:{E+1}], v[{SR}:{SR+1}], v[{SR+8}:{SR+9}]',
        f'v_pk_add_f32 v[{E+2}:{E+3}], v[{SR+2}:{SR+3}], v[{SR+10}:{SR+11}]',
        f'v_add_f32 v{E+4}, v{SM}, v{SM+1}',
        f'v_max3_f32 v{V_MX}, v{E}, v{E+1}, v{E+2}',
        f'v_max3_f32 v{V_MX}, v{E+3}, v{E+4}, v{V_MX}', 's_nop 1',
        f'v_max_f32_dpp v{V_MX}, v{V_MX}, v{V_MX} row_ror:8 row_mask:0xf bank_mask:0xf',
        f'v_mov_b32 v{V_MX2}, v{V_MX}', 's_nop 1', f'v_permlane16_swap_b32 v{V_MX}, v{V_MX2}', 's_nop 0',
        f'v_max_f32 v{V_MX}, v{V_MX}, v{V_MX2}', f'v_mov_b32 v{V_MX2}, v{V_MX}', 's_nop 1',
        f'v_permlane32_swap_b32 v{V_MX}, v{V_MX2}', 's_nop 0', f'v_max_f32 v{V_MX}, v{V_MX}, v{V_MX2}',
        f'v_mul_f32 v{V_MX}, s{R_CSC}, v{V_MX}']
    for i in range(5): sm.append(f'v_fma_f32 v{E+i}, v{E+i}, s{R_CSC}, -v{V_MX}')
    for i in (4,0,1,2,3): sm.append(f'v_exp_f32 v{E+i}, v{E+i}')
    sm+= [f'v_mov_b32_dpp v{E+5}, v{E+4} row_ror:8 row_mask:0xf bank_mask:0xf',
          f'v_cvt_pk_bf16_f32 v{V_P}, v{E}, v{E+1}', f'v_cvt_pk_bf16_f32 v{V_P+1}, v{E+2}, v{E+3}',
          f'v_cvt_pk_bf16_f32 v{V_P+4}, v{E+4}, v{E+5}',
          f'v_mov_b32_dpp v{V_P+2}, v{V_P} row_ror:8 row_mask:0xf bank_mask:0xf',
          f'v_mov_b32_dpp v{V_P+3}, v{V_P+1} row_ror:8 row_mask:0xf bank_mask:0xf']
    pf=[]
    if not NOPF:
        for k2,CT in enumerate((R_CT0,R_CT1,R_CT2)):
            pf.append([f's_lshl_b32 s{R_T}, s{CT}, 16', f's_add_u32 m0, s{R_PFM}, {k2*1024}', f's_add_u32 s{R_T}, s{R_T}, s{R_PFC}',
                       f'buffer_load_dwordx4 v{V_CO}, {SRD_WS}, s{R_T} offen {ldf} lds'])
        pf.append([f's_mov_b32 m0, s{R_PFKM}', 's_nop 0', f'buffer_load_dwordx4 v{V_LIN}, {SRD_WS}, s{R_PFK} offen {ldf} lds'])
    uf=[]
    for t in range(3):
        d=V_U+4*t
        uf+= [f'v_add_f32 v{d}, v{d}, v{d+1}', f'v_add_f32 v{d+2}, v{d+2}, v{d+3}']
    for t in range(3): uf.append(f'v_cvt_pk_bf16_f32 v{V_UP+2*t}, v{V_U+4*t}, v{V_U+4*t+2}')
    idx=[i for i,x in enumerate(sm) if x.startswith('v_exp_f32')][0]
    sm=sm[:idx]+sm[idx:idx+5]+uf+sm[idx+5:]
    k=0; pi=0
    out=[]
    for i,x in enumerate(sm):
        if k<len(um) and i%2==0 and i<20: out.append(um[k]); k+=1
        if x.startswith('s_nop') and pi<len(pf):
            out.extend(pf[pi]); pi+=1
        else: out.append(x)
    assert k==len(um) and pi==len(pf)
    for x in out: a(x)
    def u_fold():
        fold(3,V_U)
        for k in range(3): a(f'v_cvt_pk_bf16_f32 v{V_UP+2*k}, v{V_U+4*k}, v{V_U+4*k+2}')
    def u_lds():
        a(f's_lshl_b32 s{R_T}, s{R_WAVE}, 8\nv_add_u32 v{V_T0}, s{R_T}, v{V_UO}')
        for k in range(3): a(f'ds_write_b32 v{V_T0}, v{V_UP+2*k} offset:{LDS_U+k*1024}')
    def w3_stores():
        for k in range(3): a(f'ds_read_b128 v[{V_RD+4*k}:{V_RD+4*k+3}], v{V_LIN} offset:{LDS_U+k*1024}')
        for t in range(3): a(f'ds_read_b64_tr_b16 v[{V_K+2*t}:{V_K+2*t+1}], v{V_TRK} offset:{t*512}')
        a('s_waitcnt lgkmcnt(0)')
        for k,CT in enumerate((R_CT0,R_CT1,R_CT2)):
            a(f"""
            s_lshl_b32 s{R_T}, s{CT}, 14
            s_add_u32 s{R_T}, s{R_T}, s{R_UM}
            buffer_store_dwordx4 v[{V_RD+4*k}:{V_RD+4*k+3}], v{V_UG}, {SRD_WS}, s{R_T} offen {KM_FLAGS}
            """)
        a(f's_mov_b64 exec, s[{R_KMLO}:{R_KMHI}]')
        for t in range(3):
            a(f's_add_u32 s{R_T}, s{R_KM}, {t*16384}\nbuffer_store_dwordx2 v[{V_K+2*t}:{V_K+2*t+1}], v{V_KMO}, {SRD_WS}, s{R_T} offen {KM_FLAGS}')
        a('s_mov_b64 exec, -1')
    pt(a,'Pready')
    a('s_nop 1')
    for k in range(3):
        d=V_O+4*k
        a(f'v_mfma_f32_16x16x32_bf16 v[{d}:{d+3}], v[{V_C+4*k}:{V_C+4*k+3}], v[{V_P}:{V_P+3}], 0')
    a(f'v_mfma_f32_16x16x32_bf16 v[{V_SS}:{V_SS+3}], v[{V_ONE}:{V_ONE+3}], v[{V_P}:{V_P+3}], 0')
    a('s_nop 2')
    for k in range(3):
        d=V_O+4*k
        a(f'v_mfma_f32_16x16x16_bf16 v[{d}:{d+3}], v[{V_UP+2*k}:{V_UP+2*k+1}], v[{V_P+4}:{V_P+5}], v[{d}:{d+3}]')
    a(f'v_mfma_f32_16x16x16_bf16 v[{V_SS}:{V_SS+3}], v[{V_ONE}:{V_ONE+1}], v[{V_P+4}:{V_P+5}], v[{V_SS}:{V_SS+3}]')
    u_lds()
    if ONES:
        a(f"""
        s_nop 2
        v_rcp_f32 v{V_SUM}, v{V_SS}
        s_nop 0
        v_mov_b32 v{V_SUM2}, v{V_SUM}
        """)
    else:
        a(f"""
        v_pk_add_f32 v[{E}:{E+1}], v[{E}:{E+1}], v[{E+2}:{E+3}]
        v_add_f32 v{V_SUM}, v{E}, v{E+1}
        v_add_f32 v{V_SUM}, v{V_SUM}, v{E+4}
        s_nop 1
        v_add_f32_dpp v{V_SUM}, v{V_SUM}, v{V_SUM} row_ror:8 row_mask:0xf bank_mask:0xf
        v_mov_b32 v{V_SUM2}, v{V_SUM}
        s_nop 1
        v_permlane16_swap_b32 v{V_SUM}, v{V_SUM2}
        s_nop 0
        v_add_f32 v{V_SUM}, v{V_SUM}, v{V_SUM2}
        v_mov_b32 v{V_SUM2}, v{V_SUM}
        s_nop 1
        v_permlane32_swap_b32 v{V_SUM}, v{V_SUM2}
        s_nop 0
        v_add_f32 v{V_SUM}, v{V_SUM}, v{V_SUM2}
        v_rcp_f32 v{V_SUM}, v{V_SUM}
        s_nop 0
        v_mov_b32 v{V_SUM2}, v{V_SUM}
        """)
    for k in range(3):
        d=V_O+4*k
        a(f'v_pk_mul_f32 v[{d}:{d+1}], v[{d}:{d+1}], v[{V_SUM}:{V_SUM2}]\nv_pk_mul_f32 v[{d+2}:{d+3}], v[{d+2}:{d+3}], v[{V_SUM}:{V_SUM2}]')
    pt(a,'PG')
    for k in range(3):
        a(f'ds_write_b128 v{V_LINW}, v[{V_O+4*k}:{V_O+4*k+3}] offset:{LDS_R2+k*4096}')
    a('s_waitcnt lgkmcnt(0)\ns_barrier')
    pt(a,4)
    LN=a.lab('BN'); LW3=a.lab('W3'); LC=a.lab('CE')
    a(f"""
    s_cmp_eq_u32 s{R_WAVE}, 3
    s_cbranch_scc1 {LW3}
    s_cmp_lt_u32 s{R_WAVE}, s{R_NT}
    s_cbranch_scc0 {LN}
    s_lshl_b32 s{R_T}, s{R_WAVE}, 12
    v_add_u32 v{V_T0}, s{R_T}, v{V_RED}
    ds_read_b128 v[{V_RD}:{V_RD+3}], v{V_T0} offset:{LDS_R2}
    ds_read_b128 v[{V_RD+4}:{V_RD+7}], v{V_T0} offset:{LDS_R2+1024}
    s_waitcnt lgkmcnt(0)
    v_pk_add_f32 v[{V_RD}:{V_RD+1}], v[{V_RD}:{V_RD+1}], v[{V_RD+4}:{V_RD+5}]
    v_pk_add_f32 v[{V_RD+2}:{V_RD+3}], v[{V_RD+2}:{V_RD+3}], v[{V_RD+6}:{V_RD+7}]
    s_nop 1
    """)
    for i in range(4): a(f'v_add_f32_dpp v{V_GP+i}, v{V_RD+i}, v{V_RD+i} row_ror:8 row_mask:0xf bank_mask:0x3')
    a(f'buffer_store_dwordx4 v[{V_GP}:{V_GP+3}], v{V_SPG}, {SRD_WS}, s{R_GST} offen sc1')
    a(f'{LN}:')
    pt(a,5)
    LP=a.lab('PG')
    a(f"""
    s_add_u32 s{R_STEP}, s{R_STEP}, 1
    s_add_u32 s{R_T2}, s{R_SG0}, s{R_GLD}
    """)
    slot_regs(a)
    a(f"""
    s_cmp_lt_u32 s{R_WAVE}, s{R_NT}
    s_cbranch_scc0 {LC}
    """)
    if DELAY_G: a(f's_sleep {DELAY_G}')
    a(f'{LP}:')
    for q in range(4):
        a(f'buffer_load_dwordx4 v[{V_RD+4*q}:{V_RD+4*q+3}], v{V_GLD}, {SRD_WS}, s{R_T2} offen offset:{q*512} sc1')
    a('s_waitcnt vmcnt(0)')
    maxchain(a,[V_RD,V_RD+4,V_RD+8,V_RD+12])
    poll_tail(a,LP)
    pt(a,6)
    a(f"""
    v_pk_add_f32 v[{V_RD}:{V_RD+1}], v[{V_RD}:{V_RD+1}], v[{V_RD+4}:{V_RD+5}]
    v_pk_add_f32 v[{V_RD+2}:{V_RD+3}], v[{V_RD+2}:{V_RD+3}], v[{V_RD+6}:{V_RD+7}]
    v_pk_add_f32 v[{V_RD+8}:{V_RD+9}], v[{V_RD+8}:{V_RD+9}], v[{V_RD+12}:{V_RD+13}]
    v_pk_add_f32 v[{V_RD+10}:{V_RD+11}], v[{V_RD+10}:{V_RD+11}], v[{V_RD+14}:{V_RD+15}]
    v_pk_add_f32 v[{V_RD}:{V_RD+1}], v[{V_RD}:{V_RD+1}], v[{V_RD+8}:{V_RD+9}]
    v_pk_add_f32 v[{V_RD+2}:{V_RD+3}], v[{V_RD+2}:{V_RD+3}], v[{V_RD+10}:{V_RD+11}]
    s_nop 1
    """)
    for i in range(4): a(f'v_add_f32_dpp v{V_RD+i}, v{V_RD+i}, v{V_RD+i} row_ror:8 row_mask:0xf bank_mask:0xf')
    a(f"""
    s_mov_b64 exec, s[{R_MLO}:{R_MHI}]
    v_cvt_pk_bf16_f32 v{V_MP}, v{V_RD}, v{V_RD+1}
    v_cvt_pk_bf16_f32 v{V_MP+1}, v{V_RD+2}, v{V_RD+3}
    s_mov_b64 exec, -1
    buffer_store_dwordx2 v[{V_MP}:{V_MP+1}], v{V_MSG}, {SRD_WS}, s{R_MST} offen {LOC}
    """)
    a(f's_branch {LC}\n{LW3}:')
    pt(a,5)
    if FUSED: progress(a,f's{R_STEP}')
    if FUSED:
        LK=a.lab('KV'); LK4=a.lab('K4')
        a(f"""
        s_cmp_eq_u32 s{R_STEP}, 2
        s_cbranch_scc0 {LK4}
        """)
        a(f'v_mov_b32 v{V_T1}, 128')
        kvc_wait(a, off=96, thr=f'v{V_T1}')
        a(f"""
        {LK4}:
        s_add_u32 s{R_T2}, s{R_STEP}, 2
        s_and_b32 s{R_T}, s{R_T2}, 7
        s_cmp_eq_u32 s{R_T}, 0
        s_cbranch_scc0 {LK}
        s_cmp_lt_u32 s{R_T2}, 64
        s_cbranch_scc0 {LK}
        s_lshr_b32 s{R_T2}, s{R_T2}, 3
        """)
        kvc_wait(a, big=True)
        a(f'{LK}:')
    a('s_waitcnt vmcnt(0)')
    a(f's_add_u32 s{R_STEP}, s{R_STEP}, 1')
    slot_regs(a)
    if PROF: a('s_memtime s[16:17]')
    a(f'{LC}:')
    pf_advance(a)
    a(f"""
    s_add_u32 s{R_KM}, s{R_KM}, 256
    s_add_u32 s{R_UM}, s{R_UM}, 256
    """)
    if PROF:
        a(f's_cmp_eq_u32 s{R_WAVE}, 3\ns_cbranch_scc1 PTX\ns_cmp_lt_u32 s{R_WAVE}, s{R_NT}\ns_cbranch_scc1 PTX\ns_memtime s[16:17]\nPTX:')
    pt(a,7)
    pt_acc(a)
    if PROF:
        LS3=a.lab('S3')
        a(f"""
        s_cmp_eq_u32 s{R_WAVE}, 3
        s_cbranch_scc0 {LS3}
        s_lshl_b32 s72, s{R_G}, 4
        s_add_u32 s72, s72, s{R_I}
        s_lshl_b32 s72, s72, 8
        s_lshl_b32 s73, s{R_STEP}, 2
        s_add_u32 s72, s72, s73
        s_add_u32 s72, s72, {WS_TS+65536}
        v_mov_b32 v{V_T0}, s71
        s_mov_b64 exec, 1
        buffer_store_dword v{V_T0}, off, {SRD_WS}, s72
        s_mov_b64 exec, -1
        {LS3}:
        """)
    a('s_branch REC_LOOP\nREC_LAST:')
    LP=a.lab('PV')
    a(f'{LP}:')
    for st in range(3):
        a(f'buffer_load_dwordx4 v[{V_VF+4*st}:{V_VF+4*st+3}], v{V_LIN}, {SRD_WS}, s{R_T2} offen offset:{st*1024} sc1')
    a('s_waitcnt vmcnt(0)')
    maxchain(a,[f+1,f+3,f+5,f+7,f+9,f+11])
    poll_tail(a,LP)
    for x in um: a(x)
    a('s_nop 7')
    u_fold()
    u_lds()
    LE=a.lab('RL')
    a(f's_waitcnt lgkmcnt(0)\ns_barrier\ns_cmp_eq_u32 s{R_WAVE}, 3\ns_cbranch_scc0 {LE}')
    w3_stores()
    if FUSED:
        a('s_waitcnt vmcnt(0)')
        progress(a,'64')
    a(f'{LE}:')
```

```python
import sys, os
from common import *
import gemm
from gemm import *
import rec, fin, parta
from build import load_args, srd, emit, P_AX,P_AWQKV,P_AWO,P_BX,P_MEM,P_WQ,P_WK,P_WV,P_WO,P_OUT,P_DBG,P_WS
KN='concat_heads__linear_attn_block__memory_aug_recurrent_mem_tr__prompt_kernel'
LDS_TOT=max(rec.LDS_REC,parta.LDS_KV,LDS_GEMM,fin.LDS_FIN)+64
LDS_TK=LDS_TOT-64
SRD_D='s[96:99]'
W_ITEM=100; W_SPIN=101
D_Q=80; D_KVC=96; D_QD=128; D_A1=160; D_A2=164; D_AS=168; D_START=64; D_H0=172; D_TOT=176; D_MODE=180
R_SLOW=26
DECIDE_SPIN=20000
FAST_NEED=int(os.environ.get('FAST_NEED','32'))
FINE_FROM=int(os.environ.get('FINE_FROM','56'))
def build_queues():
    Q=[]
    for q in range(4):
        H=list(range(8*q,8*q+8)); L=[]
        for half in (0,1):
            L+=[('KVC1',half*64+h) for h in H]+[('KVC1',half*64+32+h) for h in H]
        L+=[('KVC',rt*64+h) for rt in (1,2) for h in H]+[('KVC',rt*64+32+h) for rt in (1,2) for h in H]
        work=os.environ.get('NOWORK','0')!='1'
        nofin=os.environ.get('NOFIN','0')=='1'
        F=lambda lo,hi: [] if nofin else [x for s in range(lo,hi) if s%4==q for x in (([('FP',s*8+4)] if s<FINE_FROM else [('FP',s*8+k) for k in range(4)])+[('FO',s*4+k) for k in range(4)])]
        if os.environ.get('ORD','1')=='1':
            for h in H: L+=[('KVC',rt*64+h) for rt in (3,4,5,6)]+[('KVC',rt*64+32+h) for rt in (3,4,5,6)]
            L+=[('KVC',7*64+h) for h in H]+[('KVC',7*64+32+h) for h in H]
        else:
            for rts in ((3,4),(5,6),(7,)):
                L+=[('KVC',rt*64+h) for h in H for rt in rts]+[('KVC',rt*64+32+h) for h in H for rt in rts]
        if work:
            segs=lambda lo,hi: [s for s in range(lo,hi) if s%4==q]
            FPc=lambda lo,hi: [] if nofin else [('FP',s*8+4) for s in segs(lo,hi)]
            FO=lambda lo,hi: [] if nofin else [('FO',s*4+k) for s in segs(lo,hi) for k in range(4)]
            L+=[('A1',rt*10+c) for c in range(q,10,4) for rt in range(8)]
            L+=[('Q',rt*32+h) for h in H for rt in (0,1,2,3)]
            L+=FPc(0,24)
            L+=[('A2',i) for i in range(q,20,4)]
            L+=[('Q',rt*32+h) for h in H for rt in (4,5,6,7)]
            L+=FO(0,24)
            L+=FPc(24,36)
            L+=[('AS',i) for i in range(q,64,4)]
            L+=FO(24,36)
            L+=FPc(36,48)
            L+=[('A3',i) for i in range(q,32,4)]
            L+=FO(36,48)
            L+=FPc(48,FINE_FROM)
            L+=FO(48,FINE_FROM)
            L+=F(FINE_FROM,64)
        if os.environ.get('QTEST','0')=='1': L=L[:32]+[('KVC',64+h) for h in H for _ in range(2)]+[('KVC',64+32+h) for h in H for _ in range(2)]+[('Q',h) for h in H for _ in range(12)]
        Q.append(L)
    return Q
QUEUES=build_queues()
QSTRIDE=max(len(l) for l in QUEUES)+1
TYPES={'FP':6,'FO':8,'KVC1':7,'KVC':0,'Q':1,'A1':2,'A2':3,'AS':4,'A3':5,'F':6}
W_TYPE=94; W_PAR=93
W_QID=30
D_KQ=32
D_JOIN=184
ST=os.environ.get('ST','sc1')
FSLEEP=int(os.environ.get('FSLEEP','20'))
FSLEEP2=int(os.environ.get('FSLEEP2','6'))
WARM_FROM=int(os.environ.get('WARM_FROM','56'))
WARM_AHEAD=int(os.environ.get('WARM_AHEAD','3'))


def wait_ge(a, off_expr, val, wv='s48'):
    L=a.lab('WG'); D=a.lab('WD'); X=a.lab('WX')
    a(f'''
    s_cmp_eq_u32 {wv}, 0
    s_cbranch_scc0 {X}
    s_mov_b32 s95, {off_expr}
    {L}:
    buffer_load_dword v1, off, {SRD_D}, s95 sc1
    s_waitcnt vmcnt(0)
    v_cmp_gt_u32 vcc, {val}, v1
    s_cbranch_vccz {X}
    s_sleep 16
    s_sub_u32 s{W_SPIN}, s{W_SPIN}, 1
    s_cbranch_scc0 {L}
    s_mov_b32 s{W_SPIN}, 0
    {X}:
    s_barrier
    ''')
def wait_multi(a, pairs, wv='s48'):
    L=a.lab('WM'); X=a.lab('WN')
    a(f's_cmp_eq_u32 {wv}, 0\ns_cbranch_scc0 {X}')
    a('v_mov_b32 v2, 64\nv_mov_b32 v4, 0\nv_and_b32 v5, 63, v0')
    for k,(off,thr) in enumerate(pairs):
        a(f'v_mov_b32 v6, {off}\nv_mov_b32 v7, {thr}\nv_cmp_eq_u32 vcc, {k}, v5\ns_nop 1\nv_cndmask_b32 v2, v2, v6, vcc\nv_cndmask_b32 v4, v4, v7, vcc')
    a(f'''
    {L}:
    buffer_load_dword v1, v2, {SRD_D}, 0 offen sc1
    s_waitcnt vmcnt(0)
    v_cmp_gt_u32 vcc, v4, v1
    s_cbranch_vccz {X}
    s_sleep 12
    s_sub_u32 s{W_SPIN}, s{W_SPIN}, 1
    s_cbranch_scc0 {L}
    s_mov_b32 s{W_SPIN}, 0
    {X}:
    s_barrier
    ''')
def signal(a, off_expr, wv='s48'):
    X=a.lab('SG')
    a(f'''
    s_waitcnt vmcnt(0)
    s_barrier
    s_cmp_eq_u32 {wv}, 0
    s_cbranch_scc0 {X}
    s_mov_b32 s95, {off_expr}
    v_mov_b32 v1, 1
    s_mov_b64 exec, 1
    buffer_atomic_add v1, off, {SRD_D}, s95
    s_mov_b64 exec, -1
    {X}:
    ''')

def ilog(a,k,val=None,vt=15,cyc=False):
    if not gemm.TS_ON: return
    L=a.lab('IL')
    a(f'''
    v_readfirstlane_b32 s61, v0
    s_cmp_lt_u32 s61, 64
    s_cbranch_scc0 {L}
    {'s_memtime' if cyc else 's_memrealtime'} s[62:63]
    s_waitcnt lgkmcnt(0)
    s_lshl_b32 s61, s3, 5
    s_add_u32 s61, s61, {WS_TS+262144+k*4}
    v_mov_b32 v{vt}, {val if val else 's62'}
    s_mov_b64 exec, 1
    buffer_store_dword v{vt}, off, s[40:43], s61
    s_mov_b64 exec, -1
    {L}:
    ''')
def wave_id(a):
    a('v_lshrrev_b32 v1, 6, v0\ns_nop 0\nv_readfirstlane_b32 s48, v1\ns_nop 3')

def kernel(a):
    TB=2
    a('s_cmp_ge_u32 s2, 256\ns_cbranch_scc1 K_END')
    load_args(a)
    srd(a,40,P_WS,WS_SIZE)
    srd(a,44,P_DBG,256)
    a(f'''
    s_getreg_b32 s70, hwreg(HW_REG_XCC_ID)
    s_and_b32 s70, s70, 7
    v_cmp_eq_u32 vcc, 0, v0
    s_and_saveexec_b64 s[72:73], vcc
    s_cbranch_execz K_NOAT
    s_lshl_b32 s71, s70, 2
    v_mov_b32 v1, 1
    v_mov_b32 v3, 1
    s_mov_b32 s74, {D_TOT}
    buffer_atomic_add v1, off, s[44:47], s71 sc0
    buffer_atomic_add v3, off, s[44:47], s74 sc0
    s_waitcnt vmcnt(0)
    v_readfirstlane_b32 s71, v1
    v_readfirstlane_b32 s75, v3
    s_nop 3
    s_mov_b32 s76, 0
    s_cmp_lt_u32 s75, 128
    s_cbranch_scc1 K_DECIDE
    s_cmp_ge_u32 s70, 4
    s_cbranch_scc1 K_DECIDED
    s_cmp_ge_u32 s71, 32
    s_cbranch_scc1 K_DECIDED
    K_DECIDE:
    s_mov_b32 s77, {DECIDE_SPIN}
    s_mov_b32 s82, 0
    K_DLOOP:
    s_mov_b32 s74, 0
    buffer_load_dwordx4 v[4:7], off, s[44:47], s74 sc1
    buffer_load_dwordx4 v[8:11], off, s[44:47], s74 offset:16 sc1
    s_mov_b32 s74, {D_TOT}
    buffer_load_dwordx2 v[12:13], off, s[44:47], s74 sc1
    s_waitcnt vmcnt(0)
    v_readfirstlane_b32 s76, v13
    s_nop 3
    s_cmp_lg_u32 s76, 0
    s_cbranch_scc1 K_DECIDED
    v_min_u32 v4, v4, v5
    v_min_u32 v6, v6, v7
    v_min_u32 v4, v4, v6
    v_min_u32 v8, v8, v9
    v_min_u32 v10, v10, v11
    v_min_u32 v8, v8, v10
    s_nop 0
    v_readfirstlane_b32 s78, v4
    v_readfirstlane_b32 s79, v8
    v_readfirstlane_b32 s80, v12
    s_nop 3
    s_mov_b32 s81, 0
    s_cmp_ge_u32 s78, {FAST_NEED}
    s_cbranch_scc0 K_NOTFAST
    s_cmp_ge_u32 s79, 1
    s_cbranch_scc0 K_NOTFAST
    s_mov_b32 s81, 1
    s_branch K_TRY
    K_NOTFAST:
    s_cmp_ge_u32 s82, 256
    s_cselect_b32 s81, 2, 0
    s_mov_b32 s82, s80
    s_sub_u32 s77, s77, 1
    s_cselect_b32 s81, 2, s81
    s_cmp_eq_u32 s81, 0
    s_cbranch_scc0 K_TRY
    s_sleep 2
    s_branch K_DLOOP
    K_TRY:
    v_mov_b32 v4, s81
    v_mov_b32 v5, 0
    s_mov_b32 s74, {D_MODE}
    buffer_atomic_cmpswap v[4:5], off, s[44:47], s74 sc0
    s_waitcnt vmcnt(0)
    v_readfirstlane_b32 s76, v4
    s_nop 3
    s_cmp_eq_u32 s76, 0
    s_cselect_b32 s76, s81, s76
    K_DECIDED:
    v_mov_b32 v4, s71
    v_mov_b32 v5, s75
    v_mov_b32 v6, s76
    v_mov_b32 v2, {LDS_TK}
    ds_write_b96 v2, v[4:6]
    s_waitcnt lgkmcnt(0)
    K_NOAT:
    s_mov_b64 exec, s[72:73]
    s_barrier
    v_mov_b32 v2, {LDS_TK}
    ds_read_b96 v[4:6], v2
    s_waitcnt lgkmcnt(0)
    v_readfirstlane_b32 s71, v4
    v_readfirstlane_b32 s75, v5
    v_readfirstlane_b32 s76, v6
    s_barrier
    s_cmp_eq_u32 s76, 2
    s_cbranch_scc1 K_SLOWMODE
    s_cmp_ge_u32 s70, 4
    s_cbranch_scc1 K_OTHER
    s_cmp_ge_u32 s71, 32
    s_cbranch_scc1 WORKER_FAR
    s_lshl_b32 s{rec.R_G}, s70, 1
    s_lshr_b32 s72, s71, 4
    s_add_u32 s{rec.R_G}, s{rec.R_G}, s72
    s_and_b32 s{rec.R_I}, s71, 15
    s_mov_b32 s{R_SLOW}, 0
    s_branch K_REC
    K_SLOWMODE:
    s_cmp_ge_u32 s75, 128
    s_cbranch_scc1 WORKER_FAR
    s_lshr_b32 s{rec.R_G}, s75, 4
    s_and_b32 s{rec.R_I}, s75, 15
    s_mov_b32 s{R_SLOW}, 1
    s_branch K_REC
    WORKER_FAR:
    s_branch WORKER_T
    K_REC:
    ''')
    rec.rec_setup(a)
    if gemm.TS_ON:
        a(f'''
        s_lshl_b32 s72, s{rec.R_G}, 4
        s_add_u32 s72, s72, s{rec.R_I}
        v_mov_b32 v15, s72
        s_lshl_b32 s72, s2, 8
        s_add_u32 s72, s72, {WS_TS+27*4}
        s_mov_b64 exec, 1
        buffer_store_dword v15, off, s[40:43], s72
        s_mov_b64 exec, -1
        ''')
    ts(a,16,vt=15); ts(a,22,vt=15,real=True)
    rec.WHOOK=(lambda k: ts(a,k,vt=15,real=True)) if gemm.TS_ON else None
    rec.rec_load_weights(a,P_WQ,P_WK,P_WV,P_WO)
    ts(a,17,vt=15); ts(a,23,vt=15,real=True)
    rec.TSHOOK=lambda: ts(a,24,vt=15,real=True)
    a(f's_cmp_eq_u32 s{R_SLOW}, 1\ns_cbranch_scc1 K_RECS_FAR')
    rec.LOC=''
    rec.rec_main(a,P_MEM,ldf='sc1')
    a('s_branch K_RECDONE\nK_RECS_FAR:')
    a2=Asm(); rec.LOC='sc1'; prof=rec.PROF; rec.PROF=False; hook=rec.TSHOOK; rec.TSHOOK=None
    rec.rec_main(a2,P_MEM,ldf='sc1',slow=True)
    rec.PROF=prof; rec.TSHOOK=hook; rec.LOC=''
    for l in a2.lines:
        for lab in ('REC_LOOP','REC_BC2','REC_BC','REC_LAST'): l=l.replace(lab,'S'+lab)
        a.lines.append(l)
    a('K_RECDONE:')
    a('s_waitcnt vmcnt(0)')
    ts(a,18,vt=15); ts(a,25,vt=15,real=True)
    rec.dump_prof(a)
    a('WORKER_T:\ns_branch WORKER\nK_OTHER:')
    a('s_cmp_eq_u32 s70, 4\ns_cbranch_scc0 WORKER\ns_cmp_eq_u32 s71, 0\ns_cbranch_scc0 WORKER')
    rec.measure_parity(a)
    a('WORKER:\ns_waitcnt lgkmcnt(0)')
    load_args(a)
    srd(a,96,P_DBG,256)
    srd(a,40,P_WS,WS_SIZE)
    a(f's_mov_b32 s{W_SPIN}, 3000000')
    wave_id(a)
    a(f'''
    s_getreg_b32 s31, hwreg(HW_REG_XCC_ID)
    s_and_b32 s31, s31, 3
    s_mov_b32 s{W_QID}, s31
    s_cmp_eq_u32 s48, 0
    s_cbranch_scc0 W_JN
    s_mov_b64 exec, 1
    s_mov_b32 s94, 0
    W_JL:
    s_add_u32 s95, s31, s94
    s_and_b32 s95, s95, 3
    s_mov_b32 s{W_QID}, s95
    s_lshl_b32 s95, s95, 2
    s_add_u32 s95, s95, {D_JOIN}
    v_mov_b32 v1, 1
    buffer_atomic_add v1, off, {SRD_D}, s95 sc0
    s_waitcnt vmcnt(0)
    v_readfirstlane_b32 s95, v1
    s_nop 3
    s_cmp_lt_u32 s95, 32
    s_cbranch_scc1 W_JD
    s_add_u32 s94, s94, 1
    s_cmp_lt_u32 s94, 4
    s_cbranch_scc1 W_JL
    s_mov_b32 s{W_QID}, s31
    W_JD:
    v_mov_b32 v1, s{W_QID}
    v_mov_b32 v2, {LDS_TK}
    ds_write_b32 v2, v1
    s_waitcnt lgkmcnt(0)
    s_mov_b64 exec, -1
    W_JN:
    s_barrier
    v_mov_b32 v2, {LDS_TK}
    ds_read_b32 v1, v2
    s_waitcnt lgkmcnt(0)
    v_readfirstlane_b32 s{W_QID}, v1
    s_mov_b32 s31, 0
    ''')
    a('s_mov_b32 s3, 2047')
    a('W_LOOP:')
    ilog(a,2)
    wave_id(a)
    a(f'''
    s_add_u32 s94, s{W_QID}, s31
    s_and_b32 s94, s94, 3              ; q
    s_lshl_b32 s95, s94, 2
    s_add_u32 s95, s95, {D_KQ}
    s_barrier
    s_cmp_eq_u32 s48, 0
    s_cbranch_scc0 W_NOTK
    s_mov_b64 exec, 1
    v_mov_b32 v1, 1
    buffer_atomic_add v1, off, {SRD_D}, s95 sc0
    s_waitcnt vmcnt(0)
    v_mov_b32 v2, {LDS_TK}
    ds_write_b32 v2, v1
    s_waitcnt lgkmcnt(0)
    s_mov_b64 exec, -1
    W_NOTK:
    s_barrier
    v_mov_b32 v2, {LDS_TK}
    ds_read_b32 v1, v2
    s_waitcnt lgkmcnt(0)
    v_readfirstlane_b32 s{W_ITEM}, v1
    s_nop 3
    s_min_u32 s{W_ITEM}, s{W_ITEM}, {QSTRIDE-1}
    s_mul_i32 s94, s94, {QSTRIDE}
    s_add_u32 s94, s94, s{W_ITEM}
    s_mov_b32 s3, s94
    s_lshl_b32 s94, s94, 2
    s_getpc_b64 s[62:63]
    W_PC:
    s_add_u32 s62, s62, QTAB-W_PC
    s_addc_u32 s63, s63, 0
    s_load_dword s95, s[62:63], s94
    s_waitcnt lgkmcnt(0)
    s_cmp_eq_u32 s95, -1
    s_cbranch_scc0 W_GOT
    s_add_u32 s31, s31, 1
    s_cmp_lt_u32 s31, 4
    s_cbranch_scc1 W_LOOP
    s_branch K_END_FAR
    W_GOT:
    s_lshr_b32 s{W_TYPE}, s95, 16
    s_and_b32 s{W_PAR}, s95, 0xffff
    ''')
    a(f'''
    s_cmp_eq_u32 s{W_TYPE}, 8
    s_cbranch_scc1 W_FO_FAR
    s_cmp_eq_u32 s{W_TYPE}, 7
    s_cbranch_scc1 W_P1_FAR
    s_cmp_eq_u32 s{W_TYPE}, 6
    s_cbranch_scc1 W_FIN_FAR
    s_cmp_eq_u32 s{W_TYPE}, 5
    s_cbranch_scc1 W_A3_FAR
    s_cmp_eq_u32 s{W_TYPE}, 4
    s_cbranch_scc1 W_AS_FAR
    s_cmp_eq_u32 s{W_TYPE}, 3
    s_cbranch_scc1 W_A2_FAR
    s_branch W_PROJ
    W_FO_FAR:
    s_branch W_FO_T
    W_P1_FAR:
    s_branch W_P1_T
    K_END_FAR:
    s_branch K_END_T
    W_FIN_FAR:
    s_branch W_FIN_T
    W_A3_FAR:
    s_branch W_A3_T
    W_AS_FAR:
    s_branch W_AS_T
    W_A2_FAR:
    s_branch W_A2_T
    W_PROJ:
    ''')
    ilog(a,0); ilog(a,3,f's{W_TYPE}')
    def emit_proj(TB, P, only_kvc):
        gemm_lane_setup(a,TB)
        srd(a,32,P_BX,2048*640*2)
        srd(a,44,P_WO,32*192*640*2)
        a(f's_mul_i32 s{S_WOL}, s{S_WAVE}, 3072')
        if only_kvc:
            a(f'''
            s_lshr_b32 s66, s{W_PAR}, 6
            s_lshl_b32 s{S_TOK0}, s66, 7
            s_and_b32 s65, s{W_PAR}, 31
            s_bitcmp1_b32 s{W_PAR}, 5
            s_cselect_b32 s67, 0, 2
            ''')
        else:
            a(f'''
            s_cmp_eq_u32 s{W_TYPE}, 1
            s_cbranch_scc1 {P}_Q
            s_cmp_eq_u32 s{W_TYPE}, 2
            s_cbranch_scc1 {P}_A1
            s_lshr_b32 s66, s{W_PAR}, 6
            s_and_b32 s65, s{W_PAR}, 31
            s_bitcmp1_b32 s{W_PAR}, 5
            s_cselect_b32 s67, 0, 2
            s_branch {P}_GO
            {P}_Q:
            s_lshr_b32 s66, s{W_PAR}, 5
            s_and_b32 s65, s{W_PAR}, 31
            s_mov_b32 s67, 1
            s_branch {P}_GO
            {P}_A1:
            s_mul_i32 s66, s{W_PAR}, 6554
            s_lshr_b32 s66, s66, 16
            s_mul_i32 s69, s66, 10
            s_sub_u32 s65, s{W_PAR}, s69
            s_mov_b32 s67, 3
            {P}_GO:
            s_lshl_b32 s{S_TOK0}, s66, 8
            ''')
        a(f'''
        s_mul_i32 s{S_COL}, s65, 384
        s_mov_b32 s{S_WSTRIDE}, 12288
        s_mov_b32 s36, s{P_WV}
        s_mov_b32 s37, s{P_WV+1}
        s_mov_b32 s{S_DST}, 0
        s_cmp_eq_u32 s67, 0
        s_cselect_b32 s36, s{P_WK}, s36
        s_cselect_b32 s37, s{P_WK+1}, s37
        s_cselect_b32 s{S_DST}, {WS_KX}, s{S_DST}
        s_cmp_eq_u32 s67, 1
        s_cselect_b32 s36, s{P_WQ}, s36
        s_cselect_b32 s37, s{P_WQ+1}, s37
        s_cselect_b32 s{S_DST}, {WS_QX}, s{S_DST}
        s_mov_b32 s38, {640*6144*2}
        s_mov_b32 s39, 0x20000
        ''')
        if not only_kvc:
            a(f'''
            s_cmp_eq_u32 s67, 3
            s_cbranch_scc0 {P}_NOTA
            s_mov_b32 s{S_WSTRIDE}, 3840
            s_mov_b32 s36, s{P_AWQKV}
            s_mov_b32 s37, s{P_AWQKV+1}
            s_mov_b32 s38, {640*1920*2}
            s_mov_b32 s32, s{P_AX}
            s_mov_b32 s33, s{P_AX+1}
            s_mov_b32 s{S_DST}, {WS_QA}
            {P}_NOTA:
            ''')
        proj_item_setup(a,TB)
        a(f'''
        s_lshr_b32 s{S_T2}, s{S_TOK0}, 5
        s_mul_i32 s{S_T3}, s{S_WAVE}, {TB}
        s_add_u32 s{S_T2}, s{S_T2}, s{S_T3}
        s_mul_i32 s68, s65, {12*64}
        s_add_u32 s68, s68, s{S_T2}
        s_lshl_b32 s68, s68, 10
        s_add_u32 s{S_D0}, s68, s{S_DST}
        s_add_u32 s{S_D1}, s{S_D0}, 1024
        s_mul_i32 s68, s65, {40*64}
        s_add_u32 s68, s68, s{S_T2}
        s_lshl_b32 s68, s68, 10
        s_add_u32 s{S_C0}, s68, {WS_CX}
        s_add_u32 s{S_C1}, s{S_C0}, 1024
        s_mul_i32 s68, s65, 192
        s_mul_i32 s69, s{S_WAVE}, 48
        s_add_u32 s68, s68, s69
        s_mul_i32 s{S_WO}, s68, 1280
        ''')
        gemm.DMAF=''
        a(f'''
        v_lshrrev_b32 v{V_T}, 2, v{V_LANE}
        v_mul_u32_u24 v{V_T}, 1280, v{V_T}
        v_and_b32 v{V_WG2}, 3, v{V_LANE}
        v_lshlrev_b32 v{V_WG2}, 4, v{V_WG2}
        v_add_u32 v{V_WG2}, v{V_WG2}, v{V_T}
        ''')
        ilog(a,4,vt=14); ilog(a,1,vt=14,cyc=True)
        proj_main(a,TB,6,vc_flag='s67')
        ilog(a,5,vt=14); ilog(a,7,vt=14,cyc=True)
        a(f's_cmp_eq_u32 s67, 2\ns_cbranch_scc1 {P}_VC')
        if not only_kvc: a(f's_cmp_eq_u32 s67, 3\ns_cbranch_scc1 {P}_A1E')
        store_epilogue(a,TB,6,SRD_WS,flags=ST)
        ilog(a,6,vt=14)
        def sig_kvc():
            if only_kvc:
                LH=a.lab('H0')
                a('s_waitcnt vmcnt(0)\ns_barrier')
                a(f's_cmp_eq_u32 s66, 0\ns_cbranch_scc0 {LH}\ns_cmp_eq_u32 s48, 0\ns_cbranch_scc0 {LH}\ns_mov_b32 s95, {D_H0}\nv_mov_b32 v1, 1\ns_mov_b64 exec, 1\nbuffer_atomic_add v1, off, {SRD_D}, s95\ns_mov_b64 exec, -1\n{LH}:')
                signal(a,D_KVC)
            else:
                signal(a,'s68')
        a(f'''
        s_lshl_b32 s68, s66, 2
        s_mov_b32 s69, {D_QD}
        s_cmp_eq_u32 s67, 0
        s_cselect_b32 s69, {D_KVC}, s69
        s_add_u32 s68, s68, s69
        ''')
        sig_kvc()
        a(f's_branch {P}_DONE\n{P}_VC:')
        a(f'''
        v_lshrrev_b32 v{V_T}, 2, v{V_LANE}
        v_mul_u32_u24 v{V_T}, 1280, v{V_T}
        v_and_b32 v{V_WG2}, 3, v{V_LANE}
        v_lshlrev_b32 v{V_WG2}, 4, v{V_WG2}
        v_add_u32 v{V_WG2}, v{V_WG2}, v{V_T}
        v_bfe_u32 v{V_STC}, v{V_LANE}, 4, 1
        v_lshlrev_b32 v{V_STC}, 16, v{V_STC}
        v_and_b32 v{V_T}, 15, v{V_LANE}
        v_lshl_add_u32 v{V_STC}, v{V_T}, 5, v{V_STC}
        v_lshrrev_b32 v{V_T}, 5, v{V_LANE}
        v_lshl_add_u32 v{V_STC}, v{V_T}, 4, v{V_STC}
        ''')
        vc_stage2(a,TB,flags=ST)
        ilog(a,6,vt=14)
        a(f's_lshl_b32 s68, s66, 2\ns_add_u32 s68, s68, {D_KVC}')
        sig_kvc()
        if not only_kvc:
            a(f's_branch {P}_DONE\n{P}_A1E:')
            a(f's_mul_i32 s79, s65, 6')
            parta.phi_store_epilogue(a,TB,6,79,flags=ST)
            signal(a,D_A1)
        a(f'{P}_DONE:')
    emit_proj(2,'WP',False)
    a('W_LOOP_T:\ns_branch W_LOOP_T1')
    a('W_P1_T:'); ilog(a,0); ilog(a,3,f's{W_TYPE}')
    emit_proj(1,'W1',True)
    a('W_LOOP_T1:\ns_branch W_LOOP_T2')
    a('W_A2_T:'); ilog(a,0); ilog(a,3,f's{W_TYPE}')
    wait_ge(a,D_A1,80)
    ilog(a,1)
    a(f's_mov_b32 s{parta.K_I}, s{W_PAR}')
    parta.STORE_FLAGS=ST
    parta.a2_item(a,P_AWO,ldf='sc1')
    signal(a,D_A2)
    a('W_LOOP_T2:\ns_branch W_LOOP_T3')
    a('W_AS_T:'); ilog(a,0); ilog(a,3,f's{W_TYPE}')
    wait_ge(a,D_A2,20)
    ilog(a,1)
    a(f's_mov_b32 s49, s{W_PAR}')
    parta.ascale_item(a,49,ldf='sc1')
    signal(a,D_AS)
    a('W_LOOP_T3:\ns_branch W_LOOP_T4')
    a('W_A3_T:'); ilog(a,0); ilog(a,3,f's{W_TYPE}')
    wait_ge(a,D_AS,64)
    ilog(a,1)
    gemm_lane_setup(a,TB)
    srd(a,32,P_WS,WS_SIZE)
    srd(a,36,P_WS,WS_SIZE)
    srd(a,44,P_OUT,2048*1280*2)
    a(f"""
    s_mov_b32 s68, s{W_PAR}
    s_lshr_b32 s66, s68, 2
    s_and_b32 s65, s68, 3
    s_lshl_b32 s{S_TOK0}, s66, 8
    s_mul_i32 s{S_COL}, s65, 320
    s_add_u32 s{S_COL}, s{S_COL}, {WS_M}
    s_mov_b32 s{S_WSTRIDE}, 1280
    """)
    proj_item_setup(a,TB)
    a(f"""
    s_add_u32 s{S_XBASE}, s{S_XBASE}, {WS_PQ}
    s_mul_i32 s{S_T2}, s{S_WAVE}, {32*TB}
    s_add_u32 s{S_T2}, s{S_T2}, s{S_TOK0}
    s_mul_i32 s{S_D0}, s{S_T2}, 2560
    s_mul_i32 s{S_T3}, s65, 320
    s_add_u32 s{S_D0}, s{S_D0}, s{S_T3}
    s_add_u32 s{S_D1}, s{S_D0}, {32*2560}
    v_lshrrev_b32 v{V_T2}, 5, v{V_ST}
    v_mul_u32_u24 v{V_T2}, 2560, v{V_T2}
    v_lshrrev_b32 v{V_T}, 5, v{V_LANE}
    v_lshl_add_u32 v{V_T2}, v{V_T}, 4, v{V_T2}
    """)
    gemm.DMAF='sc1'
    proj_main(a,TB,5)
    gemm.DMAF=''
    parta.out_epilogue(a,TB,5,SRD_O,V_T2)
    a('W_LOOP_T4:\ns_branch W_LOOP_T5')
    a('W_FIN_T:'); ilog(a,0); ilog(a,1); ilog(a,3,f's{W_TYPE}')
    a(f'''
    s_lshr_b32 s49, s{W_PAR}, 3
    s_and_b32 s50, s{W_PAR}, 7
    s_add_u32 s{fin.F_NQE}, s50, 1
    s_cmp_eq_u32 s50, 4
    s_cselect_b32 s50, 0, s50
    s_cselect_b32 s{fin.F_NQE}, 4, s{fin.F_NQE}
    s_lshr_b32 s68, s49, 3
    s_lshl_b32 s68, s68, 2
    s_add_u32 s67, s68, {D_KVC}
    s_add_u32 s68, s68, {D_QD}
    s_mov_b32 s69, 64
    s_cmp_lt_u32 s49, 8
    s_cselect_b32 s69, 128, s69
    ''')
    wait_multi(a,[(D_START,128),('s68',32),('s67','s69')])
    def prog_wait(thr_expr, sleep):
        L=a.lab('FP'); X=a.lab('FX')
        a(f'''
        s_cmp_eq_u32 s48, 0
        s_cbranch_scc0 {X}
        v_and_b32 v2, 63, v0
        v_lshlrev_b32 v2, 8, v2
        s_mov_b32 s57, {rec.WS_PROG}
        s_add_u32 s56, s57, 16384
        {L}:
        buffer_load_dword v4, v2, s[40:43], s57 offen sc1
        buffer_load_dword v5, v2, s[40:43], s56 offen sc1
        s_waitcnt vmcnt(0)
        v_min_u32 v4, v4, v5
        v_cmp_gt_u32 vcc, {thr_expr}, v4
        s_cbranch_vccz {X}
        s_sleep {sleep}
        s_sub_u32 s{W_SPIN}, s{W_SPIN}, 1
        s_cbranch_scc0 {L}
        s_mov_b32 s{W_SPIN}, 0
        {X}:
        s_barrier
        ''')
    fin.fin_setup(a)
    def wp():
        a('s_add_u32 s63, s49, 1')
        prog_wait('s63',FSLEEP2)
    a(f's_sub_u32 s60, s{fin.F_NQE}, s50\ns_mov_b32 s{fin.F_PW}, 0')
    a('s_cmp_eq_u32 s60, 4\ns_cbranch_scc1 W_FPC')
    fin.fp_item(a,wp)
    a('s_branch W_FPD\nW_FPC:')
    a('s_add_u32 s63, s49, 1')
    prog_wait('s63',FSLEEP)
    fin.fin_setup(a)
    fin.fpc_item(a)
    a('W_FPD:')
    a(f'''
    s_waitcnt vmcnt(0)
    s_barrier
    s_cmp_eq_u32 s48, 0
    s_cbranch_scc0 W_FPX
    s_lshl_b32 s61, s49, 8
    s_add_u32 s61, s61, {WS_FPD}
    v_mov_b32 v9, s60
    s_mov_b64 exec, 1
    buffer_atomic_add v9, off, s[40:43], s61
    s_mov_b64 exec, -1
    W_FPX:
    s_branch W_LOOP_T5
    W_FO_T:
    ''')
    ilog(a,0); ilog(a,3,f's{W_TYPE}')
    a(f's_lshr_b32 s49, s{W_PAR}, 2\ns_and_b32 s50, s{W_PAR}, 3')
    a(f's_lshr_b32 s68, s49, 3\ns_lshl_b32 s68, s68, 2\ns_add_u32 s68, s68, {D_KVC}')
    a('s_mov_b32 s69, 64\ns_cmp_lt_u32 s49, 8\ns_cselect_b32 s69, 128, s69')
    wait_multi(a,[(D_START,128),('s68','s69')])
    srd(a,44,P_OUT,2048*1280*2)
    fin.fin_setup(a,masks=False)
    def wf():
        L=a.lab('FW'); X=a.lab('FY')
        a(f'''
        s_cmp_eq_u32 s48, 0
        s_cbranch_scc0 {X}
        s_lshl_b32 s61, s49, 8
        s_add_u32 s61, s61, {WS_FPD}
        {L}:
        buffer_load_dword v9, off, s[40:43], s61 sc1
        s_waitcnt vmcnt(0)
        v_cmp_gt_u32 vcc, 4, v9
        s_cbranch_vccz {X}
        s_sleep {FSLEEP2}
        s_sub_u32 s{W_SPIN}, s{W_SPIN}, 1
        s_cbranch_scc0 {L}
        s_mov_b32 s{W_SPIN}, 0
        {X}:
        s_barrier
        ''')
        ilog(a,1)
    fin.fo_item(a,wf)
    a('W_LOOP_T5:\ns_branch W_LOOP\nK_END_T:\ns_waitcnt vmcnt(0)')
    wave_id(a); ts(a,26,vt=9,real=True)
    a('K_END:\ns_endpgm')

if __name__=='__main__':
    rec.FUSED=True; rec.KM_FLAGS='sc1'
    path=sys.argv[1] if len(sys.argv)>1 else 'test.s'
    from build import HDR
    a=Asm(); kernel(a)
    tab=['.p2align 2','QTAB:']
    for L in QUEUES:
        ent=[(TYPES[t]<<16)|p for (t,p) in L]+[0xffffffff]*(QSTRIDE-len(L))
        for k in range(0,len(ent),8): tab.append('.long '+', '.join(hex(x) for x in ent[k:k+8]))
    a.lines.extend(tab)
    txt=HDR.rstrip('\n')+f'\n; @launch grid=(256,1,1) block=(256,1,1) lds={LDS_TOT}\n.amdgcn_target "amdgcn-amd-amdhsa--gfx950"\n.text\n.globl {KN}\n.p2align 8\n.type {KN},@function\n{KN}:\n'+a.text()+f'''.section .rodata,"a"
.p2align 6
.amdhsa_kernel {KN}
  .amdhsa_next_free_vgpr 512
  .amdhsa_next_free_sgpr 102
  .amdhsa_accum_offset 256
  .amdhsa_group_segment_fixed_size 0
  .amdhsa_kernarg_size 104
  .amdhsa_user_sgpr_count 2
  .amdhsa_user_sgpr_kernarg_segment_ptr 1
  .amdhsa_system_sgpr_workgroup_id_x 1
  .amdhsa_float_denorm_mode_32 3
.end_amdhsa_kernel
'''
    open(path,'w').write(txt)
```
